```python
import torch

def _softmax(x, axis=-1):
    return torch.softmax(x, dim=axis)

def _gelu(x):
    return torch.nn.functional.gelu(x, approximate='tanh')

def _silu(x):
    return torch.nn.functional.silu(x)

def _sigmoid(x):
    return torch.sigmoid(x)

def _layernorm(x, axis=-1, eps=1e-05):
    m = x.mean(dim=axis, keepdim=True)
    v = x.var(dim=axis, keepdim=True, unbiased=False)
    return (x - m) / torch.sqrt(v + eps)

def _scatter_add(tgt, idx, src, axis=0):
    return tgt.clone().index_add_(axis, idx, src)

def _segment_sum(src, seg, n):
    out = torch.zeros((n,) + src.shape[1:], dtype=src.dtype)
    return out.index_add_(0, seg, src)

def _pad(x, pw):
    flat = tuple((v for pair in reversed(pw) for v in pair))
    return torch.nn.functional.pad(x, flat)
kernel_name = 'standalone__molecular_angular_painn__graph'

def setup_inputs():

    _w = lambda a: (lambda t: t.to(torch.bfloat16) if t.is_floating_point() else t)(torch.as_tensor(a))
    N, deg, D = (10000, 32, 128)
    n_rbf = max(0, 4)
    E = N * deg
    cutoff = 5.0
    freqs = (torch.arange(1, n_rbf + 1) * torch.pi / cutoff).to(float)
    return {'sv': _w((lambda *s: torch.randn(*s, dtype=torch.bfloat16) * 0.4)(N, 4, D) * 0.3), 'pos': _w((lambda *s: torch.randn(*s, dtype=torch.bfloat16) * 3.2)(N, 3) * 1.2), 'src': _w((lambda lo, hi, *s: torch.randint(lo, hi, s))(0, N, E).to(torch.int64)), 'dst': _w((lambda lo, hi, *s: torch.randint(lo, hi, s))(0, N, E).to(torch.int64)), 'freqs': _w(freqs), 'w_phi1': _w((lambda *s: torch.randn(*s, dtype=torch.bfloat16) * 3.2)(D, D) / D ** 0.5), 'w_phi2': _w((lambda *s: torch.randn(*s, dtype=torch.bfloat16) * 3.2)(D, 3 * D) / D ** 0.5), 'w_rbf': _w((lambda *s: torch.randn(*s, dtype=torch.bfloat16) * 3.2)(n_rbf, 3 * D) / n_rbf ** 0.5)}

def reference(sv, pos, src, dst, freqs, w_phi1, w_phi2, w_rbf):
    N, _, D = sv.shape
    E = src.shape[0]
    PI, cutoff = (3.141592653589793, 5.0)
    s, v = (sv[:, 0, :].clone(), sv[:, 1:, :].clone())
    r_vec = pos[src] - pos[dst]
    d = torch.sqrt((r_vec * r_vec).sum(-1) + 1e-08)
    r_hat = r_vec / d[:, None]
    rbf = torch.sin(d[:, None] * freqs[None, :]) / d[:, None]
    fcut = 0.5 * (torch.cos(PI * d / cutoff) + 1.0)
    fcut = torch.where(d < cutoff, fcut, 0.0 * d)
    Wf = rbf @ w_rbf * fcut[:, None]
    phi = (_silu(s @ w_phi1) @ w_phi2)[src]
    m = phi * Wf
    m_s, m_vv, m_vr = (m[:, :D].clone(), m[:, D:2 * D].clone(), m[:, 2 * D:].clone())
    ds = _segment_sum(m_s, dst, N)
    dv_e = m_vv[:, None, :] * v[src] + m_vr[:, None, :] * r_hat[:, :, None]
    dv = _segment_sum(dv_e.reshape(E, 3 * D), dst, N).reshape(N, 3, D)
    return sv + torch.concatenate([ds[:, None, :], dv], axis=1)
```

```python
import re

TRANS = ("v_exp_f32","v_log_f32","v_rcp_f32","v_rsq_f32","v_sqrt_f32","v_sin_f32","v_cos_f32","v_rcp_iflag_f32")
REG_RE = re.compile(r"^(-|abs\()?\s*([vsa])(\d+)\)?$|^(-)?([vsa])\[(\d+):(\d+)\]$")

def regs_of(tok):
    tok = tok.strip()
    if tok in ("vcc",): return [("s","vcc")]
    if tok in ("vcc_lo","vcc_hi"): return [("s","vcc")]
    if tok == "exec": return [("s","exec")]
    if tok == "m0": return [("s","m0")]
    m = REG_RE.match(tok)
    if not m: return []
    if m.group(2): return [(m.group(2), int(m.group(3)))]
    return [(m.group(5), i) for i in range(int(m.group(6)), int(m.group(7))+1)]

def split_ops(s):
    out=[]; cur=""; depth=0
    for ch in s:
        if ch in "[(": depth+=1
        if ch in "])": depth-=1
        if ch=="," and depth==0: out.append(cur); cur=""
        else: cur+=ch
    if cur.strip(): out.append(cur)
    return [o.strip() for o in out]

class Ins:
    def __init__(self, text):
        self.text = text
        t = text.split(";")[0].strip()
        self.label = t.endswith(":")
        self.directive = t.startswith(".")
        self.kind = "other"; self.w=set(); self.r=set(); self.states=1
        self.mn = ""
        if self.label or self.directive or not t:
            self.states = 0; self.kind = "label" if self.label else "dir"; return
        parts = t.split(None,1)
        mn = parts[0]; self.mn = mn
        rest = parts[1] if len(parts)>1 else ""
        ops = split_ops(rest)
        mods = ""
        if ops:
            sp = ops[-1].split()
            ops[-1] = sp[0]; mods = " ".join(sp[1:])
        self.mods = mods
        R = lambda lst: set(x for o in lst for x in regs_of(o))
        if mn == "s_nop":
            self.kind="nop"; self.states=int(ops[0],0)+1
        elif mn.startswith("v_mfma"):
            self.kind="mfma"; self.w=R(ops[:1]); self.ab=R(ops[1:3]); self.c=R(ops[3:4]); self.r=self.ab|self.c
            self.passes = 4 if "16x16x32" in mn or "16x16x16" in mn else 8
        elif mn.startswith("v_"):
            self.kind = "trans" if mn.replace("_e32","").replace("_e64","") in TRANS else "valu"
            nd = 1
            if mn.startswith(("v_add_co","v_sub_co","v_addc_co","v_subb_co","v_subrev_co","v_mad_u64","v_div_scale")): nd=2
            if mn.startswith("v_permlane") or mn.startswith("v_swap"):
                self.w=R(ops[:2]); self.r=R(ops[:2])
            else:
                self.w=R(ops[:nd]); self.r=R(ops[nd:])
            if mn.startswith(("v_fmac","v_mac","v_dot2c","v_writelane","v_pk_fmac")): self.r |= R(ops[:1])
            if mn.startswith("v_cndmask") and len(ops)==3: self.r.add(("s","vcc"))
            self.dpp = ("dpp" in mn) or ("row_" in mods) or ("quad_perm" in mods)
            if self.dpp: self.r |= R(ops[:1])
            if mn.startswith("v_cmpx"): self.w.add(("s","exec"))
        elif mn.startswith("ds_"):
            self.kind="ds"
            if mn.startswith("ds_read") or "_rtn" in mn or mn.startswith(("ds_bpermute","ds_permute","ds_swizzle")):
                self.w=R(ops[:1]); self.r=R(ops[1:])
            else: self.r=R(ops)
        elif mn.startswith(("buffer_","global_","flat_")):
            self.lds = " lds" in (" "+mods)
            if "load" in mn and not self.lds:
                self.kind="vload"; self.w=R(ops[:1]); self.r=R(ops[1:])
            elif "load" in mn:
                self.kind="vload"; self.r=R(ops); self.r.add(("s","m0"))
            else:
                self.kind="vstore"; self.r=R(ops)
                self.wide = ("x3" in mn or "x4" in mn)
                self.data = R(ops[:1]) if mn.startswith("buffer_") else R(ops[1:2])
                if "atomic" in mn and "sc0" in mods: self.w = R(ops[:1])
        elif mn.startswith("s_"):
            if mn.startswith(("s_load","s_buffer_load","s_memtime","s_memrealtime")):
                self.kind="smem"; self.w=R(ops[:1]); self.r=R(ops[1:])
            elif mn.startswith(("s_branch","s_cbranch","s_endpgm","s_barrier","s_waitcnt","s_setprio","s_sleep")):
                self.kind="ctl"
            elif mn.startswith("s_cmp") or mn.startswith("s_bitcmp"):
                self.kind="salu"; self.r=R(ops)
            else:
                self.kind="salu"; self.w=R(ops[:1]); self.r=R(ops[1:])
                if "saveexec" in mn: self.w.add(("s","exec")); self.r.add(("s","exec"))
                if mn.startswith(("s_addk","s_mulk")): self.r|=R(ops[:1])

def need(p, c):
    n = 0
    isv = lambda s: set(x for x in s if x[0] in "va")
    iss = lambda s: set(x for x in s if x[0]=="s")
    pv = p.kind in ("valu","trans")
    cv = c.kind in ("valu","trans")
    if pv:
        wv = isv(p.w); ws = iss(p.w)
        if c.kind=="mfma" and wv & c.r: n=max(n,2)
        if cv:
            if c.mn.startswith(("v_readfirstlane","v_readlane")) and wv & c.r: n=max(n,1)
            if getattr(c,"dpp",False) and wv & c.r: n=max(n,2)
            if c.mn.startswith("v_permlane") and wv & c.r: n=max(n,2)
            if ws & iss(c.r):
                n=max(n, 4 if c.mn.startswith(("v_readlane","v_writelane")) else 2)
            if p.kind=="trans" and c.kind!="trans" and wv & (c.r): n=max(n,1)
            if ("sdwa" in p.mn or "op_sel" in getattr(p,"mods","")) and wv & (c.r|c.w): n=max(n,1)
        if c.kind in ("vload","vstore") and ws & iss(c.r): n=max(n,5)
        if ("s","exec") in p.w: n=max(n,5) if (cv or c.kind=="mfma") else n
    if p.kind=="mfma":
        tab = {4:(8,6,3), 8:(12,10,7)}[p.passes]
        if c.kind=="mfma":
            if p.w & c.ab: n=max(n,tab[0])
            if p.w & c.c and not (p.w==c.c and p.passes==c.passes): n=max(n,tab[1])
            if p.w & c.w and not (p.w==c.c): n=max(n,tab[1])
        elif cv:
            if p.w & (c.r|c.w): n=max(n,tab[0])
            if p.c & c.w: n=max(n,tab[2])
        elif c.kind in ("ds","vload","vstore"):
            if p.w & (c.r|c.w): n=max(n,tab[0])
    if p.kind=="salu" and ("s","m0") in p.w and c.kind=="vload" and getattr(c,"lds",False): n=max(n,1)
    if p.kind=="vstore" and getattr(p,"wide",False):
        if cv and p.data & c.w: n=max(n,2)
        elif p.data & c.w: n=max(n,1)
    return n

def fix_hazards(lines):
    out=[]; hist=[]
    added=0
    for t in lines:
        c = Ins(t)
        if c.kind in ("label","dir"):
            out.append(t); continue
        dist=0; req=0
        for p in reversed(hist):
            k = need(p,c)
            if k>dist: req=max(req,k-dist)
            dist += p.states
            if dist>=20: break
        if req>0:
            nop = Ins("s_nop %d"%(req-1)); out.append("    s_nop %d ; auto"%(req-1)); hist.append(nop); added+=1
        out.append(t); hist.append(c)
        if len(hist)>40: hist=hist[-40:]
    return out, added

class G:
    def __init__(self): self.l=[]
    def I(self, s, *a):
        self.l.append("    "+(s % a if a else s))
    def L(self, s): self.l.append(s+":")
    def C(self, s): self.l.append("    ; "+s)
    def raw(self, s): self.l.append(s)
def vr(b,n): return "v[%d:%d]"%(b,b+n-1) if n>1 else "v%d"%b
def sr(b,n): return "s[%d:%d]"%(b,b+n-1) if n>1 else "s%d"%b
```

```python
import sys, struct
from asmlib import *

N=10000; E=320000; D=128
NB=625
C=125; EC=2560
T=3
NMLP=(625+T-1)//T
NWG1=C+NMLP
TAB_OFF=0; TAB_SZ=N*1280
REC_OFF=1<<24; REC_SZ=E*32
OFFS_OFF=2<<24; OFFS_SZ=NB*512
OOB=0x7FFFFF00
def f2u(x): return struct.unpack("<I",struct.pack("<f",x))[0]

P = dict(NBUF=2, STORE_MOD="", TABSTORE_MOD="")
for a in sys.argv[2:]:
    k,v=a.split("="); P[k]= int(v) if v.lstrip("-").isdigit() else v

def srd(g, d, base, size, off=0):
    if off:
        g.I("s_add_u32 s%d, s%d, 0x%x", d, base, off)
        g.I("s_addc_u32 s%d, s%d, 0", d+1, base+1)
    else:
        g.I("s_mov_b32 s%d, s%d", d, base)
        g.I("s_mov_b32 s%d, s%d", d+1, base+1)
    g.I("s_mov_b32 s%d, 0x%x", d+2, size)
    g.I("s_mov_b32 s%d, 0x20000", d+3)

L_CNT=0; L_SCAN=4096; L_LIST=4224; L_POS=14464; L_EDGE_END=L_POS+61440
HS=272; L_H=0; L_P=T*16*HS; L_MLP_END=L_P+T*16*768
LDS1=max(L_EDGE_END,L_MLP_END)

def bf_round1(g, d, s, tmp=None):
    g.I("v_cvt_pk_bf16_f32 v%d, v%d, v%d", d, s, s)
    g.I("v_lshlrev_b32 v%d, 16, v%d", d, d)

def pos_addr(g, a, sh, n, sbase):
    g.I("v_mad_u32_u24 v%d, v%d, 6, s%d", a, n, sbase)
    g.I("v_lshlrev_b32 v%d, 3, v%d", sh, a)
    g.I("v_and_b32 v%d, -4, v%d", a, a)

def pos_unpack(g, x,y,z, w0,w1,sh):
    g.I("v_alignbit_b32 v%d, v%d, v%d, v%d", y, w1, w0, sh)
    g.I("v_lshrrev_b32 v%d, v%d, v%d", z, sh, w1)
    g.I("v_lshlrev_b32 v%d, 16, v%d", x, y)
    g.I("v_and_b32 v%d, 0xffff0000, v%d", y, y)
    g.I("v_lshlrev_b32 v%d, 16, v%d", z, z)

def k1_edge(g):
    g.L("K1_EDGE")
    SPOS,SSRC,SDST,SREC,SOFF=24,28,32,36,40
    MASK=44
    srd(g,SPOS,6,60000); srd(g,SSRC,8,E*4); srd(g,SDST,10,E*4)
    srd(g,SREC,18,REC_SZ,REC_OFF); srd(g,SOFF,18,OFFS_SZ,OFFS_OFF)
    g.I("s_load_dwordx2 s[72:73], s[12:13], 0")
    g.I("v_and_b32 v1, 63, v0")
    g.I("v_lshlrev_b32 v1, 4, v1")
    g.I("v_lshlrev_b32 v2, 4, v0")
    g.I("v_lshlrev_b32 v3, 3, v0")
    g.I("s_mul_i32 s64, s20, 15360")
    for grp in range(4):
        g.I("s_add_u32 s65, s64, %d", grp*4096)
        g.I("s_add_u32 s66, s65, %d", L_POS)
        g.I("s_mov_b32 m0, s66")
        g.I("s_nop 0")
        for i in range(4*grp, min(4*grp+4,15)):
            g.I("buffer_load_dwordx4 v1, s[%d:%d], s65 offen offset:%d lds", SPOS,SPOS+3,(i&3)*1024)
    g.I("s_mul_i32 s66, s2, %d", EC*4)
    g.I("s_add_u32 s67, s66, 4096")
    g.I("s_add_u32 s68, s66, 8192")
    VS,VD,VR=10,20,30
    for (b,S) in ((VS,SSRC),(VD,SDST)):
        g.I("buffer_load_dwordx4 %s, v2, s[%d:%d], s66 offen", vr(b,4),S,S+3)
        g.I("buffer_load_dwordx4 %s, v2, s[%d:%d], s67 offen", vr(b+4,4),S,S+3)
        g.I("buffer_load_dwordx2 %s, v3, s[%d:%d], s68 offen", vr(b+8,2),S,S+3)
    for i in range(4,8): g.I("v_mov_b32 v%d, 0", i)
    g.I("ds_write_b128 v2, v[4:7] offset:%d", L_CNT)
    g.I("v_mov_b32 v8, 1")
    g.I("v_mov_b32 v9, 0x200")
    g.I("s_mov_b32 s69, %d", L_POS)
    g.I("s_mov_b32 s70, 0x%x", f2u(25.25))
    g.I("s_waitcnt vmcnt(0) lgkmcnt(0)")
    g.I("s_barrier")
    W=40
    for b in range(2):
        for e in range(5):
            r=W+6*e; ei=5*b+e
            pos_addr(g, 70, r+4, VS+ei, 69)
            g.I("ds_read2_b32 %s, v70 offset0:0 offset1:1", vr(r,2))
            pos_addr(g, 71, r+5, VD+ei, 69)
            g.I("ds_read2_b32 %s, v71 offset0:0 offset1:1", vr(r+2,2))
        for e in range(5):
            r=W+6*e; ei=5*b+e
            g.I("s_waitcnt lgkmcnt(%d)", (8-2*e) + e)
            pos_unpack(g,72,73,74, r,r+1,r+4)
            pos_unpack(g,75,76,77, r+2,r+3,r+5)
            g.I("v_sub_f32 v72, v72, v75")
            g.I("v_sub_f32 v73, v73, v76")
            g.I("v_sub_f32 v74, v74, v77")
            g.I("v_mul_f32 v72, v72, v72")
            g.I("v_fmac_f32 v72, v73, v73")
            g.I("v_fmac_f32 v72, v74, v74")
            g.I("v_lshrrev_b32 v78, 2, v%d", VD+ei)
            g.I("v_and_b32 v78, -4, v78")
            m=MASK+2*ei
            g.I("v_cmp_nge_f32 s[%d:%d], v72, s70", m,m+1)
            g.I("v_cmp_class_f32 vcc, v72, v9")
            g.I("s_or_b64 s[%d:%d], s[%d:%d], vcc", m,m+1,m,m+1)
            g.I("s_mov_b64 exec, s[%d:%d]", m,m+1)
            g.I("ds_add_rtn_u32 v%d, v78, v8 offset:%d", VR+ei, L_CNT)
            g.I("s_mov_b64 exec, -1")
    g.I("s_waitcnt lgkmcnt(0)")
    g.I("s_barrier")
    g.I("s_cmp_lg_u32 s20, 0")
    g.I("s_cbranch_scc1 K1E_SCAN_DONE")
    g.I("v_mul_u32_u24 v70, 48, v0")
    for i in range(3): g.I("ds_read_b128 %s, v70 offset:%d", vr(40+4*i,4), L_CNT+16*i)
    g.I("s_waitcnt lgkmcnt(0)")
    g.I("v_add_u32 v71, v40, v41")
    for i in range(2,12): g.I("v_add_u32 v71, v71, v%d", 40+i)
    g.I("v_mov_b32 v72, v71")
    for sh in (1,2,4,8):
        g.I("v_add_u32_dpp v72, v72, v72 row_shr:%d row_mask:0xf bank_mask:0xf bound_ctrl:0", sh)
    g.I("v_add_u32_dpp v72, v72, v72 row_bcast:15 row_mask:0xa bank_mask:0xf")
    g.I("v_add_u32_dpp v72, v72, v72 row_bcast:31 row_mask:0xc bank_mask:0xf")
    g.I("v_sub_u32 v73, v72, v71")
    for i in range(12):
        g.I("v_lshl_or_b32 v%d, v%d, 16, v73", 52+i, 40+i)
        if i<11: g.I("v_add_u32 v73, v73, v%d", 40+i)
    for i in range(3): g.I("ds_write_b128 v70, %s offset:%d", vr(52+4*i,4), L_CNT+16*i)
    g.I("v_readlane_b32 s71, v72, 63")
    g.I("v_mov_b32 v74, 0")
    g.I("v_mov_b32 v73, s71")
    g.I("ds_write_b32 v74, v73 offset:%d", L_SCAN)
    g.I("s_waitcnt lgkmcnt(0)")
    g.L("K1E_SCAN_DONE")
    g.I("s_barrier")
    for ei in range(10):
        g.I("v_lshrrev_b32 v78, 2, v%d", VD+ei)
        g.I("v_and_b32 v78, -4, v78")
        g.I("ds_read_b32 v%d, v78 offset:%d", 40+ei, L_CNT)
    g.I("v_lshlrev_b32 v70, 2, v0")
    for i in range(3): g.I("ds_read_b32 v%d, v70 offset:%d", 50+i, L_CNT+1024*i)
    g.I("v_mov_b32 v74, 0")
    g.I("ds_read_b32 v53, v74 offset:%d", L_SCAN)
    g.I("s_and_b32 s64, s2, 7")
    g.I("s_lshl_b32 s64, s64, 6")
    g.I("s_lshr_b32 s65, s2, 3")
    g.I("s_lshl_b32 s65, s65, 2")
    g.I("s_add_u32 s64, s64, s65")
    g.I("s_add_u32 s65, s64, 131072")
    g.I("s_add_u32 s66, s64, 262144")
    g.I("v_lshlrev_b32 v71, 9, v0")
    g.I("s_waitcnt lgkmcnt(0)")
    for i in range(3):
        g.I("buffer_store_dword v%d, v71, s[%d:%d], s%d offen", 50+i, SOFF,SOFF+3, 64+i)
    g.I("v_readfirstlane_b32 s71, v53")
    for ei in range(10):
        m=MASK+2*ei
        g.I("v_and_b32 v%d, 0xffff, v%d", 40+ei, 40+ei)
        g.I("v_add_lshl_u32 v%d, v%d, v%d, 2", 40+ei, 40+ei, VR+ei)
        g.I("v_lshl_or_b32 v72, v%d, 16, v%d", VD+ei, VS+ei)
        g.I("s_mov_b64 exec, s[%d:%d]", m,m+1)
        g.I("ds_write_b32 v%d, v72 offset:%d", 40+ei, L_LIST)
        g.I("s_mov_b64 exec, -1")
    g.I("s_lshl_b32 s74, s72, 16")
    g.I("s_and_b32 s75, s72, 0xffff0000")
    g.I("s_lshl_b32 s76, s73, 16")
    g.I("s_and_b32 s77, s73, 0xffff0000")
    g.I("s_mul_i32 s78, s2, %d", EC*32)
    g.I("s_mov_b32 s79, 0")
    g.I("s_mov_b32 s80, 1280")
    g.I("s_mov_b32 s81, 0x%x", f2u(5.0))
    g.I("v_mov_b32 v10, v0")
    g.I("s_waitcnt lgkmcnt(0)")
    g.I("s_barrier")
    g.L("K1E_LOOP")
    g.I("s_cmp_ge_u32 s79, s71")
    g.I("s_cbranch_scc1 K1_END")
    g.I("v_cmp_gt_u32 vcc, s71, v10")
    g.I("s_and_saveexec_b64 s[82:83], vcc")
    g.I("s_cbranch_execz K1E_NEXT")
    g.I("v_lshlrev_b32 v11, 2, v10")
    g.I("ds_read_b32 v12, v11 offset:%d", L_LIST)
    g.I("s_waitcnt lgkmcnt(0)")
    g.I("v_and_b32 v13, 0xffff, v12")
    g.I("v_lshrrev_b32 v14, 16, v12")
    pos_addr(g, 15, 16, 13, 69)
    g.I("ds_read2_b32 v[20:21], v15 offset0:0 offset1:1")
    pos_addr(g, 17, 18, 14, 69)
    g.I("ds_read2_b32 v[22:23], v17 offset0:0 offset1:1")
    g.I("v_mul_u32_u24 v44, s80, v13")
    g.I("v_bfe_u32 v45, v14, 2, 2")
    g.I("v_lshlrev_b32 v45, 13, v45")
    g.I("v_and_b32 v46, 3, v14")
    g.I("v_lshl_or_b32 v45, v46, 6, v45")
    g.I("s_waitcnt lgkmcnt(0)")
    pos_unpack(g,24,25,26, 20,21,16)
    pos_unpack(g,27,28,29, 22,23,18)
    g.I("v_sub_f32 v24, v24, v27")
    g.I("v_sub_f32 v25, v25, v28")
    g.I("v_sub_f32 v26, v26, v29")
    g.I("v_cvt_pk_bf16_f32 v27, v24, v25")
    g.I("v_cvt_pk_bf16_f32 v28, v26, v26")
    g.I("v_lshlrev_b32 v24, 16, v27")
    g.I("v_and_b32 v25, 0xffff0000, v27")
    g.I("v_lshlrev_b32 v26, 16, v28")
    g.I("v_mul_f32 v27, v24, v24")
    g.I("v_mul_f32 v28, v25, v25")
    g.I("v_mul_f32 v29, v26, v26")
    g.I("v_cvt_pk_bf16_f32 v27, v27, v28")
    g.I("v_cvt_pk_bf16_f32 v29, v29, v29")
    g.I("v_and_b32 v28, 0xffff0000, v27")
    g.I("v_lshlrev_b32 v27, 16, v27")
    g.I("v_lshlrev_b32 v29, 16, v29")
    g.I("v_add_f32 v27, v27, v28")
    g.I("v_add_f32 v27, v27, v29")
    bf_round1(g,27,27)
    g.I("v_add_f32 v27, 0x%x, v27", f2u(1e-8))
    bf_round1(g,27,27)
    g.I("v_sqrt_f32 v27, v27")
    bf_round1(g,27,27)
    g.I("v_rcp_f32 v28, v27")
    for k in range(4): g.I("v_mul_f32 v%d, s%d, v27", 30+k, 74+k)
    g.I("v_mul_f32 v34, 0x%x, v27", f2u(3.141592653589793))
    g.I("v_cvt_pk_bf16_f32 v30, v30, v31")
    g.I("v_cvt_pk_bf16_f32 v32, v32, v33")
    bf_round1(g,34,34)
    g.I("v_and_b32 v31, 0xffff0000, v30")
    g.I("v_lshlrev_b32 v30, 16, v30")
    g.I("v_and_b32 v33, 0xffff0000, v32")
    g.I("v_lshlrev_b32 v32, 16, v32")
    g.I("v_mul_f32 v34, 0x%x, v34", f2u(0.2))
    bf_round1(g,34,34)
    for k in range(5): g.I("v_mul_f32 v%d, 0.15915494, v%d", 30+k, 30+k)
    for k in range(5): g.I("v_fract_f32 v%d, v%d", 30+k, 30+k)
    for k in range(4): g.I("v_sin_f32 v%d, v%d", 30+k, 30+k)
    g.I("v_cos_f32 v34, v34")
    g.I("v_mul_f32 v24, v24, v28")
    g.I("v_mul_f32 v25, v25, v28")
    g.I("v_mul_f32 v26, v26, v28")
    g.I("v_cvt_pk_bf16_f32 v30, v30, v31")
    g.I("v_cvt_pk_bf16_f32 v32, v32, v33")
    bf_round1(g,34,34)
    g.I("v_and_b32 v31, 0xffff0000, v30")
    g.I("v_lshlrev_b32 v30, 16, v30")
    g.I("v_and_b32 v33, 0xffff0000, v32")
    g.I("v_lshlrev_b32 v32, 16, v32")
    g.I("v_add_f32 v34, 1.0, v34")
    bf_round1(g,34,34)
    for k in range(4): g.I("v_mul_f32 v%d, v%d, v28", 30+k, 30+k)
    g.I("v_mul_f32 v34, 0.5, v34")
    g.I("v_mul_f32 v35, 0, v27")
    g.I("v_cmp_gt_f32 vcc, s81, v27")
    g.I("v_cvt_pk_bf16_f32 v40, v30, v31")
    g.I("v_cvt_pk_bf16_f32 v41, v32, v33")
    g.I("v_cndmask_b32 v34, v35, v34, vcc")
    g.I("v_cvt_pk_bf16_f32 v43, v25, v26")
    g.I("v_cvt_pk_bf16_f32 v42, v34, v24")
    g.I("v_cmp_o_f32 s[84:85], v35, v35")
    g.I("s_andn2_b64 s[84:85], s[84:85], vcc")
    g.I("v_mov_b32 v46, 0x%x", OOB)
    g.I("v_lshlrev_b32 v11, 5, v10")
    g.I("v_cndmask_b32 v44, v44, v46, s[84:85]")
    g.I("buffer_store_dwordx4 v[40:43], v11, s[%d:%d], s78 offen", SREC,SREC+3)
    g.I("buffer_store_dwordx2 v[44:45], v11, s[%d:%d], s78 offen offset:16", SREC,SREC+3)
    g.L("K1E_NEXT")
    g.I("s_mov_b64 exec, -1")
    g.I("v_add_u32 v10, 256, v10")
    g.I("s_add_u32 s79, s79, 256")
    g.I("s_branch K1E_LOOP")

def k1_mlp(g):
    SSV,SW1,SW2,STAB=24,28,32,36
    srd(g,SSV,4,N*1024); srd(g,SW1,14,128*256); srd(g,SW2,16,128*768); srd(g,STAB,18,TAB_SZ,TAB_OFF)
    WA=2; WB=68; XA=132; DD=180
    VT=228
    vq,vj,va1,va2,va2b,vs,vh,vhr,vp=228,229,230,231,232,233,234,235,236
    g.I("v_and_b32 v1, 63, v0")
    g.I("v_lshrrev_b32 v%d, 4, v1", vq)
    g.I("v_and_b32 v%d, 15, v0", vj)
    g.I("s_lshl_b32 s40, s20, 6")
    g.I("v_lshl_add_u32 v%d, v%d, 2, s40", va1, vj)
    g.I("v_mov_b32 v%d, v%d", vh, va1)
    g.I("v_mul_u32_u24 v1, %d, v%d", 8*768, vq)
    g.I("v_add_u32 v%d, v1, v%d", va2, va1)
    g.I("v_add_u32 v%d, 3072, v%d", va2b, va2)
    g.I("v_lshl_add_u32 v%d, v%d, 11, v%d", va1, vq, va1)
    for ks in range(4):
        g.I("s_mov_b32 s%d, %d", 44+ks, ks*8192)
        g.I("s_mov_b32 s%d, %d", 48+ks, ks*24576)
    g.I("s_sub_u32 s41, s2, %d", C)
    g.I("s_mul_i32 s41, s41, %d", T*16)
    g.I("v_add_u32 v1, s41, v%d", vj)
    g.I("v_lshlrev_b32 v1, 10, v1")
    g.I("v_lshl_add_u32 v%d, v%d, 4, v1", vs, vq)
    for t in range(T): g.I("s_mov_b32 s%d, %d", 52+t, t*16384)
    g.I("s_mov_b32 s56, 0x05040100")
    g.I("s_mov_b32 s57, 0x07060302")
    issued=[0]
    def wload(f):
        sect,ks=f//4,f%4
        for i in range(8):
            p=i>>1
            dst = (WA+4*f+p+1) if (i&1)==0 else (WB+4*f+p)
            if sect==0:
                g.I("buffer_load_dword v%d, v%d, s[%d:%d], s%d offen offset:%d", dst, va1, SW1,SW1+3, 44+ks, i*256)
            else:
                va = va2 if i<4 else va2b
                g.I("buffer_load_dword v%d, v%d, s[%d:%d], s%d offen offset:%d", dst, va, SW2,SW2+3, 48+ks, (i&3)*768+(sect-1)*256)
            issued[0]+=1
    def wperm(f):
        for p in range(4):
            a=WA+4*f+p; b=WB+4*f+p
            g.I("v_perm_b32 v%d, v%d, v%d, s56", a, b, a+1)
            g.I("v_perm_b32 v%d, v%d, v%d, s57", b, b, a+1)
    def wait_done(n): g.I("s_waitcnt vmcnt(%d)", issued[0]-n)
    for f in range(4): wload(f)
    for t in range(T):
        for ks in range(4):
            g.I("buffer_load_dwordx4 %s, v%d, s[%d:%d], s%d offen offset:%d", vr(XA+16*t+4*ks,4), vs, SSV,SSV+3, 52+t, 64*ks)
            issued[0]+=1
    nS=issued[0]
    wload(4); wload(5)
    done_w={}
    g.I("v_mul_u32_u24 v1, %d, v%d", 4*HS, vq)
    g.I("v_add_u32 v%d, v1, v%d", vp, vh)
    g.I("v_mul_u32_u24 v1, %d, v%d", HS, vj)
    g.I("v_lshl_add_u32 v%d, v%d, 4, v1", vhr, vq)
    g.I("v_mul_u32_u24 v1, 3072, v%d", vq)
    g.I("v_add_u32 v%d, v1, v%d", vh, vh)
    vhw=vp
    for f in range(4):
        wait_done(8*(f+1)); wperm(f)
        if f<2: pass
    base=nS
    for f in range(6,10): wload(f)
    wait_done(nS)
    for ks in range(4):
        for t in range(T):
            for h,Wb in enumerate((WA,WB)):
                d=DD+8*t+4*h
                g.I("v_mfma_f32_16x16x32_bf16 %s, %s, %s, %s", vr(d,4), vr(XA+16*t+4*ks,4), vr(Wb+4*ks,4), "0" if ks==0 else vr(d,4))
    for f in range(4,6):
        wait_done(base+8*(f-3)); wperm(f)
    for f in range(10,12): wload(f)
    g.I("s_mov_b32 s58, 0x%x", f2u(-1.4426950408889634))
    tt=204
    for t in range(T):
        for r in range(4):
            d0=DD+8*t+r; d1=d0+4
            x0,x1,e0,e1=tt,tt+1,tt+2,tt+3
            g.I("v_cvt_pk_bf16_f32 v%d, v%d, v%d", x1, d0, d1)
            g.I("v_lshlrev_b32 v%d, 16, v%d", x0, x1)
            g.I("v_and_b32 v%d, 0xffff0000, v%d", x1, x1)
            g.I("v_mul_f32 v%d, s58, v%d", e0, x0)
            g.I("v_mul_f32 v%d, s58, v%d", e1, x1)
            g.I("v_exp_f32 v%d, v%d", e0, e0)
            g.I("v_exp_f32 v%d, v%d", e1, e1)
            g.I("v_add_f32 v%d, 1.0, v%d", e0, e0)
            g.I("v_add_f32 v%d, 1.0, v%d", e1, e1)
            g.I("v_rcp_f32 v%d, v%d", e0, e0)
            g.I("v_rcp_f32 v%d, v%d", e1, e1)
            g.I("v_mul_f32 v%d, v%d, v%d", x0, x0, e0)
            g.I("v_mul_f32 v%d, v%d, v%d", x1, x1, e1)
            g.I("v_cvt_pk_bf16_f32 v%d, v%d, v%d", d0, x0, x1)
            g.I("ds_write_b32 v%d, v%d offset:%d", vhw, d0, L_H+t*16*HS+r*HS)
            tt = 204 + ((tt-204+4) % 16)
        if t==0:
            for f in range(6,8):
                wait_done(base+8*(f-3)); wperm(f)
            for f in range(12,14): wload(f)
        if t==1:
            for f in range(8,10):
                wait_done(base+8*(f-3)); wperm(f)
            for f in range(14,16): wload(f)
    vrow,vo1,vo2,vo3=237,238,239,240
    g.I("v_lshrrev_b32 v%d, 4, v0", vrow)
    g.I("v_add_u32 v1, s41, v%d", vrow)
    g.I("v_lshlrev_b32 v%d, 10, v1", vo1)
    g.I("v_lshl_add_u32 v%d, v%d, 4, v%d", vo1, vj, vo1)
    g.I("v_mul_u32_u24 v%d, 1280, v1", vo2)
    g.I("v_lshl_add_u32 v%d, v%d, 4, v%d", vo2, vj, vo2)
    g.I("v_mul_u32_u24 v%d, 768, v%d", vo3, vrow)
    g.I("v_lshl_add_u32 v%d, v%d, 4, v%d", vo3, vj, vo3)
    VV=[WA+0,WA+4,WA+8,WA+12,WB+0,WB+4,WB+8,WB+12,244]
    g.I("s_waitcnt lgkmcnt(0)")
    g.I("s_barrier")
    for f in range(10,12):
        wait_done(base+8*(f-3)); wperm(f)
    for t in range(T):
        for x in range(3):
            g.I("buffer_load_dwordx4 %s, v%d, s[%d:%d], s%d offen offset:%d", vr(VV[3*t+x],4), vo1, SSV,SSV+3, 52+t, 256*(x+1))
            issued[0]+=1
    for t in range(T):
        for ks in range(4):
            g.I("ds_read_b128 %s, v%d offset:%d", vr(XA+16*t+4*ks,4), vhr, L_H+t*16*HS+64*ks)
    for f in range(12,16):
        wait_done(base+8*(f-3)); wperm(f)
    g.I("s_waitcnt lgkmcnt(0)")
    def g2(t):
        db=DD+24*(t&1)
        for ks in range(4):
            for sg in range(3):
                for h,Wb in enumerate((WA,WB)):
                    d=db+8*sg+4*h; f=4*(sg+1)+ks
                    g.I("v_mfma_f32_16x16x32_bf16 %s, %s, %s, %s", vr(d,4), vr(XA+16*t+4*ks,4), vr(Wb+4*f,4), "0" if ks==0 else vr(d,4))
    def g2e(t):
        db=DD+24*(t&1)
        for sg in range(3):
            for r in range(4):
                d0=db+8*sg+r
                g.I("v_cvt_pk_bf16_f32 v%d, v%d, v%d", d0, d0, d0+4)
                g.I("ds_write_b32 v%d, v%d offset:%d", vh, d0, L_P+t*12288+r*768+sg*256)
    for t in range(T):
        g2(t)
        if t>0: g2e(t-1)
    g2e(T-1)
    g.I("s_waitcnt lgkmcnt(0)")
    g.I("s_barrier")
    for t in range(T): g.I("s_mov_b32 s%d, %d", 60+t, t*16*1280)
    PH=XA
    for t in range(T):
        for sg in range(3):
            g.I("ds_read_b128 %s, v%d offset:%d", vr(PH+12*t+4*sg,4), vo3, L_P+t*12288+sg*256)
    sm=P["TABSTORE_MOD"]
    for t in range(T):
        g.I("s_waitcnt lgkmcnt(%d)", 3*(T-1-t))
        g.I("buffer_store_dwordx4 %s, v%d, s[%d:%d], s%d offen %s", vr(PH+12*t,4), vo2, STAB,STAB+3, 60+t, sm)
        g.I("buffer_store_dwordx4 %s, v%d, s[%d:%d], s%d offen offset:1024 %s", vr(PH+12*t+8,4), vo2, STAB,STAB+3, 60+t, sm)
        issued[0]+=2
        pv=DD
        for d in range(4):
            g.I("v_lshlrev_b32 v%d, 16, v%d", pv+2*d, PH+12*t+4+d)
            g.I("v_and_b32 v%d, 0xffff0000, v%d", pv+2*d+1, PH+12*t+4+d)
        for x in range(3):
            nv = base+8*12 + 3*t+x+1
            wait_done(nv)
            vv=VV[3*t+x]; u=DD+8+8*(x&1)
            for d in range(4):
                g.I("v_lshlrev_b32 v%d, 16, v%d", u+2*d, vv+d)
                g.I("v_and_b32 v%d, 0xffff0000, v%d", u+2*d+1, vv+d)
            for i in range(8): g.I("v_mul_f32 v%d, v%d, v%d", u+i, u+i, pv+i)
            for d in range(4): g.I("v_cvt_pk_bf16_f32 v%d, v%d, v%d", vv+d, u+2*d, u+2*d+1)
            g.I("buffer_store_dwordx4 %s, v%d, s[%d:%d], s%d offen offset:%d %s", vr(vv,4), vo2, STAB,STAB+3, 60+t, 256*(x+1), sm)
            issued[0]+=1
    g.I("s_endpgm")

def k1(g):
    g.raw(".p2align 8"); g.L("painn_k1_kernel")
    g.I("s_cmp_ge_u32 s2, %d", NWG1)
    g.I("s_cbranch_scc1 K1_END")
    g.I("s_load_dwordx4 s[4:7], s[0:1], 0")
    g.I("s_load_dwordx4 s[8:11], s[0:1], 16")
    g.I("s_load_dwordx4 s[12:15], s[0:1], 32")
    g.I("s_load_dwordx2 s[16:17], s[0:1], 48")
    g.I("s_load_dwordx2 s[18:19], s[0:1], 80")
    g.I("v_lshrrev_b32 v1, 6, v0")
    g.I("v_readfirstlane_b32 s20, v1")
    g.I("s_cmp_lt_u32 s2, %d", C)
    g.I("s_waitcnt lgkmcnt(0)")
    g.I("s_cbranch_scc1 K1_EDGE")
    k1_mlp(g)
    k1_edge(g)
    g.L("K1_END")
    g.I("s_endpgm")

L2_A=0; L2_RL=32768; L2_W=33792; L2_G=39936; LDS2=40960
def k2(g):
    NBUF=P["NBUF"]
    g.raw(".p2align 8"); g.L("painn_k2_kernel")
    g.I("s_cmp_ge_u32 s2, %d", NB)
    g.I("s_cbranch_scc1 K2_END")
    g.I("s_load_dwordx2 s[4:5], s[0:1], 0")
    g.I("s_load_dwordx4 s[8:11], s[0:1], 56")
    g.I("s_load_dwordx2 s[12:13], s[0:1], 80")
    SSV,SWR,SOUT,STAB,SREC,SOFF=16,20,24,28,32,36
    ACC=2
    AF=34
    VO=50
    FR=58
    DD=66
    WW=90
    MISC=102
    BB=112
    vlane,vq,vj16,vsvo,vI,vCnt,vBase,vone,vwl,vtmp=range(102,112)
    g.I("v_lshrrev_b32 v1, 6, v0")
    g.I("v_and_b32 v%d, 63, v0", vlane)
    g.I("v_readfirstlane_b32 s3, v1")
    g.I("v_lshrrev_b32 v%d, 4, v%d", vq, vlane)
    g.I("v_and_b32 v1, 15, v0")
    g.I("v_lshlrev_b32 v%d, 4, v1", vj16)
    g.I("v_and_b32 v1, 31, v0")
    g.I("s_lshl_b32 s14, s3, 5")
    g.I("v_add_u32 v1, s14, v1")
    g.I("v_lshlrev_b32 v%d, 2, v1", vtmp)
    g.I("s_lshl_b32 s15, s2, 9")
    g.I("s_waitcnt lgkmcnt(0)")
    srd(g,SOFF,12,OFFS_SZ,OFFS_OFF)
    g.I("buffer_load_dword v%d, v%d, s[%d:%d], s15 offen", vCnt, vtmp, SOFF,SOFF+3)
    srd(g,SWR,8,4*768); srd(g,SSV,4,N*1024)
    g.I("v_mul_u32_u24 v%d, 768, v%d", vtmp, vq)
    g.I("v_add_u32 v%d, v%d, v%d", vtmp, vtmp, vj16)
    g.I("s_lshl_b32 s14, s3, 8")
    WT=DD
    g.I("buffer_load_dwordx4 %s, v%d, s[%d:%d], s14 offen", vr(WT,4), vtmp, SWR,SWR+3)
    g.I("s_lshl_b32 s40, s2, 4")
    g.I("s_lshl_b32 s41, s3, 2")
    g.I("s_add_u32 s40, s40, s41")
    g.I("v_add_u32 v%d, s40, v%d", vsvo, vq)
    g.I("v_lshlrev_b32 v%d, 10, v%d", vsvo, vsvo)
    g.I("v_add_u32 v%d, v%d, v%d", vsvo, vsvo, vj16)
    SVT=AF
    for s in range(4):
        g.I("buffer_load_dwordx4 %s, v%d, s[%d:%d], 0 offen offset:%d", vr(SVT+4*s,4), vsvo, SSV,SSV+3, 256*s)
    srd(g,SREC,12,REC_SZ,REC_OFF); srd(g,STAB,12,TAB_SZ,TAB_OFF); srd(g,SOUT,10,N*1024)
    g.I("v_and_b32 v%d, 15, v1", vBase)
    g.I("v_lshrrev_b32 v1, 4, v1")
    g.I("v_lshl_add_u32 v%d, v%d, 3, v1", vBase, vBase)
    g.I("v_cmp_gt_u32 vcc, %d, v%d", C, vBase)
    g.I("s_mov_b64 s[42:43], vcc")
    g.I("s_mov_b32 s44, %d", EC)
    g.I("v_mul_lo_u32 v%d, v%d, s44", vBase, vBase)
    g.I("v_lshrrev_b32 v%d, 5, v%d", vI, vlane)
    g.I("v_mov_b32 v%d, 1", vone)
    g.I("s_mov_b32 s46, 0x05040100")
    g.I("s_mov_b32 s47, 0x07060302")
    g.I("s_mov_b32 s48, 0x%x", OOB)
    Z=VO
    def zero_fill():
        for i in range(4): g.I("v_mov_b32 v%d, 0", Z+i)
        g.I("v_lshlrev_b32 v%d, 4, v0", Z+4)
        g.I("v_lshlrev_b32 v%d, 2, v0", Z+5)
        g.I("v_mov_b32 v%d, s48", Z+6)
        for i in range(8): g.I("ds_write_b128 v%d, %s offset:%d", Z+4, vr(Z,4), L2_A+4096*i)
        g.I("ds_write_b32 v%d, v%d offset:%d", Z+5, Z+6, L2_RL)
        g.I("ds_write_b128 v%d, %s offset:%d", Z, vr(Z,4), L2_G)
        g.I("ds_write_b32 v%d, v%d offset:%d", Z, Z, L2_G+16)
    zero_fill()
    g.I("s_waitcnt vmcnt(5)")
    g.I("v_and_b32 v1, 0xffff, v%d", vCnt)
    g.I("v_lshrrev_b32 v%d, 16, v%d", vCnt, vCnt)
    g.I("v_cndmask_b32 v%d, 0, v%d, s[42:43]", vCnt, vCnt)
    g.I("v_add_lshl_u32 v%d, v%d, v1, 5", vBase, vBase)
    RC=BB
    for r in range(2):
        g.I("v_add_u32 v1, %d, v%d", 2*r, vI)
        g.I("v_lshl_add_u32 v%d, v1, 5, v%d", vtmp, vBase)
        g.I("v_cmp_lt_u32 vcc, v1, v%d", vCnt)
        g.I("v_mov_b32 v1, s48")
        g.I("v_cndmask_b32 v%d, v1, v%d, vcc", RC+8*r+6, vtmp)
        g.I("buffer_load_dwordx4 %s, v%d, s[%d:%d], 0 offen", vr(RC+8*r,4), RC+8*r+6, SREC,SREC+3)
        g.I("buffer_load_dwordx2 %s, v%d, s[%d:%d], 0 offen offset:16", vr(RC+8*r+4,2), RC+8*r+6, SREC,SREC+3)
    g.I("s_cmp_eq_u32 s3, 3")
    g.I("s_cbranch_scc1 K2_WDONE")
    g.I("s_waitcnt vmcnt(8)")
    g.I("s_lshl_b32 s14, s3, 11")
    g.I("v_lshl_add_u32 v1, v%d, 2, v%d", vq, vj16)
    g.I("v_add_u32 v1, s14, v1")
    for d in range(4):
        g.I("v_lshlrev_b32 v%d, 16, v%d", WT+4+2*d, WT+d)
        g.I("v_and_b32 v%d, 0xffff0000, v%d", WT+5+2*d, WT+d)
    for t in range(8): g.I("ds_write_b32 v1, v%d offset:%d", WT+4+t, L2_W+256*t)
    g.L("K2_WDONE")
    g.I("s_waitcnt vmcnt(4)")
    for s in range(4):
        for d in range(4):
            g.I("v_lshlrev_b32 v%d, 16, v%d", ACC+8*s+2*d, SVT+4*s+d)
            g.I("v_and_b32 v%d, 0xffff0000, v%d", ACC+8*s+2*d+1, SVT+4*s+d)
    g.I("s_mov_b64 s[50:51], 0")
    g.I("s_waitcnt lgkmcnt(0)")
    g.I("s_barrier")
    TM=DD
    def process(rc, tag):
        g.I("v_cmp_ne_u32 vcc, s48, v%d", rc+4)
        g.I("v_lshrrev_b32 v%d, 11, v%d", TM, rc+5)
        g.I("s_mov_b64 s[52:53], exec")
        g.I("s_and_b64 exec, exec, vcc")
        g.I("v_mov_b32 v%d, 0", TM+1)
        g.I("s_cbranch_execz %s_ADV", tag)
        g.I("ds_add_rtn_u32 v%d, v%d, v%d offset:%d", TM+1, TM, vone, L2_G)
        gk=TM+4; rh=TM+8; fc=TM+11
        g.I("v_lshlrev_b32 v%d, 16, v%d", gk, rc)
        g.I("v_and_b32 v%d, 0xffff0000, v%d", gk+1, rc)
        g.I("v_lshlrev_b32 v%d, 16, v%d", gk+2, rc+1)
        g.I("v_and_b32 v%d, 0xffff0000, v%d", gk+3, rc+1)
        g.I("v_lshlrev_b32 v%d, 16, v%d", fc, rc+2)
        g.I("v_and_b32 v%d, 0xffff0000, v%d", rh, rc+2)
        g.I("v_lshlrev_b32 v%d, 16, v%d", rh+1, rc+3)
        g.I("v_and_b32 v%d, 0xffff0000, v%d", rh+2, rc+3)
        for k in range(4): g.I("v_mul_f32 v%d, v%d, v%d", gk+k, gk+k, fc)
        pk=TM+12
        g.I("v_cvt_pk_bf16_f32 v%d, v%d, v%d", pk, gk, gk+1)
        g.I("v_cvt_pk_bf16_f32 v%d, v%d, v%d", pk+1, gk+2, gk+3)
        for x in range(3):
            for k in range(4): g.I("v_mul_f32 v%d, v%d, v%d", TM+20+k, gk+k, rh+x)
            g.I("v_cvt_pk_bf16_f32 v%d, v%d, v%d", pk+2+2*x, TM+20, TM+21)
            g.I("v_cvt_pk_bf16_f32 v%d, v%d, v%d", pk+3+2*x, TM+22, TM+23)
        g.I("s_waitcnt lgkmcnt(0)")
        s=TM+1
        g.I("v_cmp_lt_u32 vcc, 63, v%d", s)
        g.I("v_and_b32 v%d, 3, v%d", TM+2, s)
        g.I("v_bfe_u32 v%d, v%d, 2, 3", TM+3, s)
        g.I("v_lshl_or_b32 v%d, v%d, 3, v%d", TM+3, TM+2, TM+3)
        g.I("v_and_or_b32 v%d, v%d, 32, v%d", TM+3, s, TM+3)
        g.I("s_or_b64 s[50:51], s[50:51], vcc")
        g.I("s_andn2_b64 s[52:53], s[52:53], vcc")
        g.I("s_andn2_b64 exec, exec, vcc")
        g.I("s_cbranch_execz %s_ADV", tag)
        g.I("v_lshlrev_b32 v%d, 6, v%d", TM, TM)
        g.I("v_lshl_add_u32 v%d, v%d, 2, v%d", TM, TM+3, TM)
        g.I("ds_write_b32 v%d, v%d offset:%d", TM, rc+4, L2_RL)
        g.I("v_lshrrev_b32 v%d, 3, v%d", TM+2, TM+3)
        g.I("v_lshl_add_u32 v%d, v%d, 8, v%d", TM+2, TM+2, rc+5)
        g.I("v_and_b32 v%d, 7, v%d", TM+3, TM+3)
        g.I("v_lshl_add_u32 v%d, v%d, 1, v%d", TM+2, TM+3, TM+2)
        for m in range(4):
            for kk in range(2):
                g.I("ds_write_b16 v%d, v%d offset:%d", TM+2, pk+2*m+kk, L2_A+m*2048+(2*kk)*16)
                g.I("ds_write_b16_d16_hi v%d, v%d offset:%d", TM+2, pk+2*m+kk, L2_A+m*2048+(2*kk+1)*16)
        g.L("%s_ADV"%tag)
        g.I("s_mov_b64 exec, s[52:53]")
        g.I("v_add_u32 v%d, 2, v%d", vI, vI)
        g.I("s_mov_b64 exec, -1")
    for r in range(2):
        g.I("s_waitcnt vmcnt(%d)", 2-2*r)
        g.I("v_cmp_ne_u32 vcc, s48, v%d", RC+8*r+6)
        g.I("s_andn2_b64 exec, vcc, s[50:51]")
        g.I("s_cbranch_execz K2_GEN")
        process(RC+8*r, "K2_P%d"%r)
    g.L("K2_GEN")
    g.I("s_mov_b64 exec, -1")
    g.I("v_cmp_lt_u32 vcc, v%d, v%d", vI, vCnt)
    g.I("v_lshl_add_u32 v%d, v%d, 5, v%d", RC+6, vI, vBase)
    g.I("s_andn2_b64 exec, vcc, s[50:51]")
    g.I("s_cbranch_execz K2_GENDONE")
    g.I("buffer_load_dwordx4 %s, v%d, s[%d:%d], 0 offen", vr(RC,4), RC+6, SREC,SREC+3)
    g.I("buffer_load_dwordx2 %s, v%d, s[%d:%d], 0 offen offset:16", vr(RC+4,2), RC+6, SREC,SREC+3)
    g.I("s_waitcnt vmcnt(0)")
    process(RC, "K2_PG")
    g.I("s_branch K2_GEN")
    g.L("K2_GENDONE")
    g.I("s_mov_b64 exec, -1")
    g.I("s_waitcnt vmcnt(0)")
    g.I("s_cmp_eq_u64 s[50:51], 0")
    g.I("s_cbranch_scc1 K2_NOFLAG")
    g.I("v_mov_b32 v1, 0")
    g.I("ds_write_b32 v1, v%d offset:%d", vone, L2_G+16)
    g.L("K2_NOFLAG")
    g.I("s_waitcnt lgkmcnt(0)")
    g.I("s_barrier")
    g.I("s_lshl_b32 s14, s3, 2")
    g.I("v_mov_b32 v1, s14")
    g.I("ds_read_b32 v%d, v1 offset:%d", TM, L2_G)
    g.I("v_mov_b32 v1, 0")
    g.I("ds_read_b32 v%d, v1 offset:%d", TM+1, L2_G+16)
    g.I("s_lshl_b32 s14, s3, 13")
    g.I("v_lshl_add_u32 v%d, v%d, 4, s14", vtmp, vlane)
    g.I("s_lshl_b32 s14, s3, 8")
    g.I("v_lshl_add_u32 v%d, v%d, 5, s14", vwl, vq)
    g.I("s_waitcnt lgkmcnt(0)")
    g.I("v_readfirstlane_b32 s54, v%d", TM)
    g.I("v_readfirstlane_b32 s55, v%d", TM+1)
    g.I("s_min_u32 s54, s54, 64")
    g.I("s_mov_b32 s56, 0")
    g.L("K2_KSTEP")
    g.I("s_cmp_ge_u32 s56, s54")
    g.I("s_cbranch_scc1 K2_KDONE")
    g.I("ds_read_b128 %s, v%d offset:%d", vr(VO,4), vwl, L2_RL)
    g.I("ds_read_b128 %s, v%d offset:%d", vr(VO+4,4), vwl, L2_RL+16)
    for m in range(4): g.I("ds_read_b128 %s, v%d offset:%d", vr(AF+4*m,4), vtmp, L2_A+2048*m)
    g.I("s_waitcnt lgkmcnt(4)")
    for i in range(8): g.I("v_add_u32 v%d, v%d, v%d", VO+i, VO+i, vj16)
    order=[4,0,1,2,3]
    def loads(si):
        sec=order[si]; b=BB+32*(si%NBUF)
        for i in range(8):
            g.I("buffer_load_dwordx4 %s, v%d, s[%d:%d], 0 offen offset:%d", vr(b+4*i,4), VO+i, STAB,STAB+3, 256*sec)
    for si in range(min(NBUF,5)): loads(si)
    nl=min(NBUF,5)
    wsec={0:0,1:1,2:1,3:1,4:2}
    tiles=[(si,t) for si in range(5) for t in range(8)]
    lg=[0]
    def wread(idx):
        si,t=tiles[idx];
        g.I("ds_read_b128 %s, v%d offset:%d", vr(WW+4*(idx%3),4), vj16, L2_W+(wsec[order[si]]*8+t)*256)
    def Pm(idx):
        si,t=tiles[idx]; b=BB+32*(si%NBUF); d=t>>1; sel=46+(t&1); fr=FR+4*(idx&1)
        for p in range(4):
            g.I("v_perm_b32 v%d, v%d, v%d, s%d", fr+p, b+4*(2*p+1)+d, b+4*(2*p)+d, sel)
    def dreg(idx,x=0):
        si,t=tiles[idx]
        if order[si]==4: return DD+12*(idx&1)+4*x
        return DD+4*(idx%3)
    def Mf(idx):
        si,t=tiles[idx]; fr=FR+4*(idx&1)
        if order[si]==4:
            for x in range(3): g.I("v_mfma_f32_16x16x32_bf16 %s, %s, %s, 0", vr(dreg(idx,x),4), vr(AF+4*(x+1),4), vr(fr,4))
        else:
            g.I("v_mfma_f32_16x16x32_bf16 %s, %s, %s, 0", vr(dreg(idx),4), vr(AF,4), vr(fr,4))
    def Fm(idx):
        si,t=tiles[idx]; w=WW+4*(idx%3); sec=order[si]
        if sec==4:
            for k in range(4):
                for x in range(3): g.I("v_fmac_f32 v%d, v%d, v%d", ACC+8*(1+x)+t, w+k, dreg(idx,x)+k)
        else:
            for k in range(4): g.I("v_fmac_f32 v%d, v%d, v%d", ACC+8*sec+t, w+k, dreg(idx)+k)
    nt=len(tiles)
    wread(0); wread(1)
    for idx in range(nt+2):
        if idx<nt:
            si,t=tiles[idx]
            if t==0:
                g.I("s_waitcnt vmcnt(%d)", 8*(nl-1-si))
            Pm(idx)
            if t==7 and nl<5:
                loads(nl); nl+=1
        if idx>=2:
            g.I("s_waitcnt lgkmcnt(%d)", 1 if idx-1<nt else 0)
            Fm(idx-2)
            if idx<nt: wread(idx)
        if idx==0: g.I("s_waitcnt lgkmcnt(2)")
        if idx<nt: Mf(idx)
    g.I("v_add_u32 v%d, 1024, v%d", vtmp, vtmp)
    g.I("v_add_u32 v%d, 128, v%d", vwl, vwl)
    g.I("s_add_u32 s56, s56, 32")
    g.I("s_branch K2_KSTEP")
    g.L("K2_KDONE")
    g.I("s_cmp_eq_u32 s55, 0")
    g.I("s_cbranch_scc1 K2_OUT")
    g.I("s_barrier")
    zero_fill()
    g.I("s_mov_b64 s[50:51], 0")
    g.I("s_waitcnt lgkmcnt(0)")
    g.I("s_barrier")
    g.I("s_branch K2_GEN")
    g.L("K2_OUT")
    for s in range(4):
        for d in range(4):
            g.I("v_cvt_pk_bf16_f32 v%d, v%d, v%d", BB+4*s+d, ACC+8*s+2*d, ACC+8*s+2*d+1)
        g.I("buffer_store_dwordx4 %s, v%d, s[%d:%d], 0 offen offset:%d %s", vr(BB+4*s,4), vsvo, SOUT,SOUT+3, 256*s, P["STORE_MOD"])
    g.L("K2_END")
    g.I("s_endpgm")
    return BB+32*NBUF

def kd(name, nv, ns):
    acc=(nv+3)//4*4
    return """.amdhsa_kernel %s
  .amdhsa_next_free_vgpr %d
  .amdhsa_next_free_sgpr %d
  .amdhsa_accum_offset %d
  .amdhsa_group_segment_fixed_size 0
  .amdhsa_kernarg_size 88
  .amdhsa_user_sgpr_count 2
  .amdhsa_user_sgpr_kernarg_segment_ptr 1
  .amdhsa_system_sgpr_workgroup_id_x 1
  .amdhsa_float_denorm_mode_32 3
.end_amdhsa_kernel
""" % (name,nv,ns,acc)

g=G()
k1(g)
nv2=k2(g)
body,added=fix_hazards(g.l)
hdr=open("standalone__molecular_angular_painn__graph.s.ref").read().split("; Override")[0]
out=hdr
out+="; @launch kernel=painn_k1_kernel grid=(%d,1,1) block=(256,1,1) lds=%d\n"%(NWG1,LDS1)
out+="; @launch kernel=painn_k2_kernel grid=(%d,1,1) block=(256,1,1) lds=%d\n"%(NB,LDS2)
out+='.amdgcn_target "amdgcn-amd-amdhsa--gfx950"\n.text\n'
out+=".globl painn_k1_kernel\n.type painn_k1_kernel,@function\n.globl painn_k2_kernel\n.type painn_k2_kernel,@function\n"
out+="\n".join(body)+"\n"
out+='.section .rodata,"a"\n.p2align 6\n'+kd("painn_k1_kernel",248,96)+".p2align 6\n"+kd("painn_k2_kernel",nv2,64)
open(sys.argv[1],"w").write(out)
print("wrote",sys.argv[1],"lines",len(body),"auto nops",added,"k2 vgprs",nv2,"LDS1",LDS1)
```

```python
import sys, struct
from asmlib import *

N=10000; E=320000; D=128
NB=625
C=125; EC=2560
T=3
NMLP=(625+T-1)//T
NWG1=C+NMLP
TAB_OFF=0; TAB_SZ=N*1280
REC_OFF=1<<24; REC_SZ=E*32
OFFS_OFF=2<<24; OFFS_SZ=NB*512
OOB=0x7FFFFF00
def f2u(x): return struct.unpack("<I",struct.pack("<f",x))[0]

P = dict(NBUF=2, STORE_MOD="", TABSTORE_MOD="")
for a in sys.argv[2:]:
    k,v=a.split("="); P[k]= int(v) if v.lstrip("-").isdigit() else v

STAMP_OFF=3<<24
class St:
    base=0; n=0
def stamp_begin(base): St.base=base; St.n=0
def stamp(g):
    if not P.get("STAMP"): return
    a=St.base+2*St.n; St.n+=1
    if St.n==1: g.I("s_memtime s[%d:%d]", St.base+14,St.base+15)
    g.I("s_memrealtime s[%d:%d]", a,a+1)
    g.I("s_waitcnt lgkmcnt(0)")
def stamp_flush(g, ws, wave, kidx, sq, v):
    if not P.get("STAMP"): return
    g.I("s_memtime s[%d:%d]", sq,sq+1)
    stamp(g)
    g.I("s_sub_u32 s%d, s%d, s%d", St.base+14, sq, St.base+14)
    g.I("s_mov_b64 exec, -1")
    srd(g, sq, ws, 1<<22, STAMP_OFF+kidx*(1<<22))
    for i in range(8):
        if i<St.n or i==7: g.I("v_mov_b32 v%d, s%d", v+i, St.base+2*i)
        else: g.I("v_mov_b32 v%d, 0", v+i)
    g.I("s_lshl_b32 s%d, s2, 2", St.base)
    g.I("s_add_u32 s%d, s%d, s%d", St.base, St.base, wave)
    g.I("s_lshl_b32 s%d, s%d, 5", St.base, St.base)
    g.I("v_mov_b32 v%d, s%d", v+8, St.base)
    g.I("buffer_store_dwordx4 %s, v%d, s[%d:%d], 0 offen", vr(v,4), v+8, sq, sq+3)
    g.I("buffer_store_dwordx4 %s, v%d, s[%d:%d], 0 offen offset:16", vr(v+4,4), v+8, sq, sq+3)

def srd(g, d, base, size, off=0):
    if off:
        g.I("s_add_u32 s%d, s%d, 0x%x", d, base, off)
        g.I("s_addc_u32 s%d, s%d, 0", d+1, base+1)
    else:
        g.I("s_mov_b32 s%d, s%d", d, base)
        g.I("s_mov_b32 s%d, s%d", d+1, base+1)
    g.I("s_mov_b32 s%d, 0x%x", d+2, size)
    g.I("s_mov_b32 s%d, 0x20000", d+3)

L_CNT=0; L_SCAN=4096; L_LIST=4224; L_POS=14464; L_EDGE_END=L_POS+61440
HS=272; L_H=0; L_P=T*16*HS; L_MLP_END=L_P+T*16*768
LDS1=max(L_EDGE_END,L_MLP_END)

def bf_round1(g, d, s, tmp=None):
    g.I("v_cvt_pk_bf16_f32 v%d, v%d, v%d", d, s, s)
    g.I("v_lshlrev_b32 v%d, 16, v%d", d, d)

def pos_addr(g, a, sh, n, sbase):
    g.I("v_mad_u32_u24 v%d, v%d, 6, s%d", a, n, sbase)
    g.I("v_lshlrev_b32 v%d, 3, v%d", sh, a)
    g.I("v_and_b32 v%d, -4, v%d", a, a)

def pos_unpack(g, x,y,z, w0,w1,sh):
    g.I("v_alignbit_b32 v%d, v%d, v%d, v%d", y, w1, w0, sh)
    g.I("v_lshrrev_b32 v%d, v%d, v%d", z, sh, w1)
    g.I("v_lshlrev_b32 v%d, 16, v%d", x, y)
    g.I("v_and_b32 v%d, 0xffff0000, v%d", y, y)
    g.I("v_lshlrev_b32 v%d, 16, v%d", z, z)

def k1_edge(g):
    g.L("K1_EDGE")
    SPOS,SSRC,SDST,SREC,SOFF=24,28,32,36,40
    MASK=44
    srd(g,SPOS,6,60000); srd(g,SSRC,8,E*4); srd(g,SDST,10,E*4)
    srd(g,SREC,18,REC_SZ,REC_OFF); srd(g,SOFF,18,OFFS_SZ,OFFS_OFF)
    g.I("s_load_dwordx2 s[72:73], s[12:13], 0")
    g.I("v_and_b32 v1, 63, v0")
    g.I("v_lshlrev_b32 v1, 4, v1")
    g.I("v_lshlrev_b32 v2, 4, v0")
    g.I("v_lshlrev_b32 v3, 3, v0")
    g.I("s_mul_i32 s64, s20, 15360")
    for grp in range(4):
        g.I("s_add_u32 s65, s64, %d", grp*4096)
        g.I("s_add_u32 s66, s65, %d", L_POS)
        g.I("s_mov_b32 m0, s66")
        g.I("s_nop 0")
        for i in range(4*grp, min(4*grp+4,15)):
            g.I("buffer_load_dwordx4 v1, s[%d:%d], s65 offen offset:%d lds", SPOS,SPOS+3,(i&3)*1024)
    g.I("s_mul_i32 s66, s2, %d", EC*4)
    g.I("s_add_u32 s67, s66, 4096")
    g.I("s_add_u32 s68, s66, 8192")
    VS,VD,VR=10,20,30
    for (b,S) in ((VS,SSRC),(VD,SDST)):
        g.I("buffer_load_dwordx4 %s, v2, s[%d:%d], s66 offen", vr(b,4),S,S+3)
        g.I("buffer_load_dwordx4 %s, v2, s[%d:%d], s67 offen", vr(b+4,4),S,S+3)
        g.I("buffer_load_dwordx2 %s, v3, s[%d:%d], s68 offen", vr(b+8,2),S,S+3)
    for i in range(4,8): g.I("v_mov_b32 v%d, 0", i)
    g.I("ds_write_b128 v2, v[4:7] offset:%d", L_CNT)
    g.I("v_mov_b32 v8, 1")
    g.I("v_mov_b32 v9, 0x200")
    g.I("s_mov_b32 s69, %d", L_POS)
    g.I("s_mov_b32 s70, 0x%x", f2u(25.25))
    g.I("s_waitcnt vmcnt(0) lgkmcnt(0)")
    stamp(g)
    g.I("s_barrier")
    W=40
    for b in range(2):
        for e in range(5):
            r=W+6*e; ei=5*b+e
            pos_addr(g, 70, r+4, VS+ei, 69)
            g.I("ds_read2_b32 %s, v70 offset0:0 offset1:1", vr(r,2))
            pos_addr(g, 71, r+5, VD+ei, 69)
            g.I("ds_read2_b32 %s, v71 offset0:0 offset1:1", vr(r+2,2))
        for e in range(5):
            r=W+6*e; ei=5*b+e
            g.I("s_waitcnt lgkmcnt(%d)", (8-2*e) + e)
            pos_unpack(g,72,73,74, r,r+1,r+4)
            pos_unpack(g,75,76,77, r+2,r+3,r+5)
            g.I("v_sub_f32 v72, v72, v75")
            g.I("v_sub_f32 v73, v73, v76")
            g.I("v_sub_f32 v74, v74, v77")
            g.I("v_mul_f32 v72, v72, v72")
            g.I("v_fmac_f32 v72, v73, v73")
            g.I("v_fmac_f32 v72, v74, v74")
            g.I("v_lshrrev_b32 v78, 2, v%d", VD+ei)
            g.I("v_and_b32 v78, -4, v78")
            m=MASK+2*ei
            g.I("v_cmp_nge_f32 s[%d:%d], v72, s70", m,m+1)
            g.I("v_cmp_class_f32 vcc, v72, v9")
            g.I("s_or_b64 s[%d:%d], s[%d:%d], vcc", m,m+1,m,m+1)
            g.I("s_mov_b64 exec, s[%d:%d]", m,m+1)
            g.I("ds_add_rtn_u32 v%d, v78, v8 offset:%d", VR+ei, L_CNT)
            g.I("s_mov_b64 exec, -1")
    g.I("s_waitcnt lgkmcnt(0)")
    stamp(g)
    g.I("s_barrier")
    g.I("s_cmp_lg_u32 s20, 0")
    g.I("s_cbranch_scc1 K1E_SCAN_DONE")
    g.I("v_mul_u32_u24 v70, 48, v0")
    for i in range(3): g.I("ds_read_b128 %s, v70 offset:%d", vr(40+4*i,4), L_CNT+16*i)
    g.I("s_waitcnt lgkmcnt(0)")
    g.I("v_add_u32 v71, v40, v41")
    for i in range(2,12): g.I("v_add_u32 v71, v71, v%d", 40+i)
    g.I("v_mov_b32 v72, v71")
    for sh in (1,2,4,8):
        g.I("v_add_u32_dpp v72, v72, v72 row_shr:%d row_mask:0xf bank_mask:0xf bound_ctrl:0", sh)
    g.I("v_add_u32_dpp v72, v72, v72 row_bcast:15 row_mask:0xa bank_mask:0xf")
    g.I("v_add_u32_dpp v72, v72, v72 row_bcast:31 row_mask:0xc bank_mask:0xf")
    g.I("v_sub_u32 v73, v72, v71")
    for i in range(12):
        g.I("v_lshl_or_b32 v%d, v%d, 16, v73", 52+i, 40+i)
        if i<11: g.I("v_add_u32 v73, v73, v%d", 40+i)
    for i in range(3): g.I("ds_write_b128 v70, %s offset:%d", vr(52+4*i,4), L_CNT+16*i)
    g.I("v_readlane_b32 s71, v72, 63")
    g.I("v_mov_b32 v74, 0")
    g.I("v_mov_b32 v73, s71")
    g.I("ds_write_b32 v74, v73 offset:%d", L_SCAN)
    g.I("s_waitcnt lgkmcnt(0)")
    g.L("K1E_SCAN_DONE")
    g.I("s_barrier")
    stamp(g)
    for ei in range(10):
        g.I("v_lshrrev_b32 v78, 2, v%d", VD+ei)
        g.I("v_and_b32 v78, -4, v78")
        g.I("ds_read_b32 v%d, v78 offset:%d", 40+ei, L_CNT)
    g.I("v_lshlrev_b32 v70, 2, v0")
    for i in range(3): g.I("ds_read_b32 v%d, v70 offset:%d", 50+i, L_CNT+1024*i)
    g.I("v_mov_b32 v74, 0")
    g.I("ds_read_b32 v53, v74 offset:%d", L_SCAN)
    g.I("s_and_b32 s64, s2, 7")
    g.I("s_lshl_b32 s64, s64, 6")
    g.I("s_lshr_b32 s65, s2, 3")
    g.I("s_lshl_b32 s65, s65, 2")
    g.I("s_add_u32 s64, s64, s65")
    g.I("s_add_u32 s65, s64, 131072")
    g.I("s_add_u32 s66, s64, 262144")
    g.I("v_lshlrev_b32 v71, 9, v0")
    g.I("s_waitcnt lgkmcnt(0)")
    for i in range(3):
        g.I("buffer_store_dword v%d, v71, s[%d:%d], s%d offen", 50+i, SOFF,SOFF+3, 64+i)
    g.I("v_readfirstlane_b32 s71, v53")
    for ei in range(10):
        m=MASK+2*ei
        g.I("v_and_b32 v%d, 0xffff, v%d", 40+ei, 40+ei)
        g.I("v_add_lshl_u32 v%d, v%d, v%d, 2", 40+ei, 40+ei, VR+ei)
        g.I("v_lshl_or_b32 v72, v%d, 16, v%d", VD+ei, VS+ei)
        g.I("s_mov_b64 exec, s[%d:%d]", m,m+1)
        g.I("ds_write_b32 v%d, v72 offset:%d", 40+ei, L_LIST)
        g.I("s_mov_b64 exec, -1")
    g.I("s_lshl_b32 s74, s72, 16")
    g.I("s_and_b32 s75, s72, 0xffff0000")
    g.I("s_lshl_b32 s76, s73, 16")
    g.I("s_and_b32 s77, s73, 0xffff0000")
    g.I("s_mul_i32 s78, s2, %d", EC*32)
    g.I("s_mov_b32 s79, 0")
    g.I("s_mov_b32 s80, 1280")
    g.I("s_mov_b32 s81, 0x%x", f2u(5.0))
    g.I("v_mov_b32 v10, v0")
    g.I("s_waitcnt lgkmcnt(0)")
    g.I("s_barrier")
    stamp(g)
    g.L("K1E_LOOP")
    g.I("s_cmp_ge_u32 s79, s71")
    g.I("s_cbranch_scc1 K1E_FIN")
    g.I("v_cmp_gt_u32 vcc, s71, v10")
    g.I("s_and_saveexec_b64 s[82:83], vcc")
    g.I("s_cbranch_execz K1E_NEXT")
    g.I("v_lshlrev_b32 v11, 2, v10")
    g.I("ds_read_b32 v12, v11 offset:%d", L_LIST)
    g.I("s_waitcnt lgkmcnt(0)")
    g.I("v_and_b32 v13, 0xffff, v12")
    g.I("v_lshrrev_b32 v14, 16, v12")
    pos_addr(g, 15, 16, 13, 69)
    g.I("ds_read2_b32 v[20:21], v15 offset0:0 offset1:1")
    pos_addr(g, 17, 18, 14, 69)
    g.I("ds_read2_b32 v[22:23], v17 offset0:0 offset1:1")
    g.I("v_mul_u32_u24 v44, s80, v13")
    g.I("v_bfe_u32 v45, v14, 2, 2")
    g.I("v_lshlrev_b32 v45, 13, v45")
    g.I("v_and_b32 v46, 3, v14")
    g.I("v_lshl_or_b32 v45, v46, 6, v45")
    g.I("s_waitcnt lgkmcnt(0)")
    pos_unpack(g,24,25,26, 20,21,16)
    pos_unpack(g,27,28,29, 22,23,18)
    g.I("v_sub_f32 v24, v24, v27")
    g.I("v_sub_f32 v25, v25, v28")
    g.I("v_sub_f32 v26, v26, v29")
    g.I("v_cvt_pk_bf16_f32 v27, v24, v25")
    g.I("v_cvt_pk_bf16_f32 v28, v26, v26")
    g.I("v_lshlrev_b32 v24, 16, v27")
    g.I("v_and_b32 v25, 0xffff0000, v27")
    g.I("v_lshlrev_b32 v26, 16, v28")
    g.I("v_mul_f32 v27, v24, v24")
    g.I("v_mul_f32 v28, v25, v25")
    g.I("v_mul_f32 v29, v26, v26")
    g.I("v_cvt_pk_bf16_f32 v27, v27, v28")
    g.I("v_cvt_pk_bf16_f32 v29, v29, v29")
    g.I("v_and_b32 v28, 0xffff0000, v27")
    g.I("v_lshlrev_b32 v27, 16, v27")
    g.I("v_lshlrev_b32 v29, 16, v29")
    g.I("v_add_f32 v27, v27, v28")
    g.I("v_add_f32 v27, v27, v29")
    bf_round1(g,27,27)
    g.I("v_add_f32 v27, 0x%x, v27", f2u(1e-8))
    bf_round1(g,27,27)
    g.I("v_sqrt_f32 v27, v27")
    bf_round1(g,27,27)
    g.I("v_rcp_f32 v28, v27")
    for k in range(4): g.I("v_mul_f32 v%d, s%d, v27", 30+k, 74+k)
    g.I("v_mul_f32 v34, 0x%x, v27", f2u(3.141592653589793))
    g.I("v_cvt_pk_bf16_f32 v30, v30, v31")
    g.I("v_cvt_pk_bf16_f32 v32, v32, v33")
    bf_round1(g,34,34)
    g.I("v_and_b32 v31, 0xffff0000, v30")
    g.I("v_lshlrev_b32 v30, 16, v30")
    g.I("v_and_b32 v33, 0xffff0000, v32")
    g.I("v_lshlrev_b32 v32, 16, v32")
    g.I("v_mul_f32 v34, 0x%x, v34", f2u(0.2))
    bf_round1(g,34,34)
    for k in range(5): g.I("v_mul_f32 v%d, 0.15915494, v%d", 30+k, 30+k)
    for k in range(5): g.I("v_fract_f32 v%d, v%d", 30+k, 30+k)
    for k in range(4): g.I("v_sin_f32 v%d, v%d", 30+k, 30+k)
    g.I("v_cos_f32 v34, v34")
    g.I("v_mul_f32 v24, v24, v28")
    g.I("v_mul_f32 v25, v25, v28")
    g.I("v_mul_f32 v26, v26, v28")
    g.I("v_cvt_pk_bf16_f32 v30, v30, v31")
    g.I("v_cvt_pk_bf16_f32 v32, v32, v33")
    bf_round1(g,34,34)
    g.I("v_and_b32 v31, 0xffff0000, v30")
    g.I("v_lshlrev_b32 v30, 16, v30")
    g.I("v_and_b32 v33, 0xffff0000, v32")
    g.I("v_lshlrev_b32 v32, 16, v32")
    g.I("v_add_f32 v34, 1.0, v34")
    bf_round1(g,34,34)
    for k in range(4): g.I("v_mul_f32 v%d, v%d, v28", 30+k, 30+k)
    g.I("v_mul_f32 v34, 0.5, v34")
    g.I("v_mul_f32 v35, 0, v27")
    g.I("v_cmp_gt_f32 vcc, s81, v27")
    g.I("v_cvt_pk_bf16_f32 v40, v30, v31")
    g.I("v_cvt_pk_bf16_f32 v41, v32, v33")
    g.I("v_cndmask_b32 v34, v35, v34, vcc")
    g.I("v_cvt_pk_bf16_f32 v43, v25, v26")
    g.I("v_cvt_pk_bf16_f32 v42, v34, v24")
    g.I("v_cmp_o_f32 s[84:85], v35, v35")
    g.I("s_andn2_b64 s[84:85], s[84:85], vcc")
    g.I("v_mov_b32 v46, 0x%x", OOB)
    g.I("v_lshlrev_b32 v11, 5, v10")
    g.I("v_cndmask_b32 v44, v44, v46, s[84:85]")
    g.I("buffer_store_dwordx4 v[40:43], v11, s[%d:%d], s78 offen", SREC,SREC+3)
    g.I("buffer_store_dwordx2 v[44:45], v11, s[%d:%d], s78 offen offset:16", SREC,SREC+3)
    g.L("K1E_NEXT")
    g.I("s_mov_b64 exec, -1")
    g.I("v_add_u32 v10, 256, v10")
    g.I("s_add_u32 s79, s79, 256")
    g.I("s_branch K1E_LOOP")
    g.L("K1E_FIN")
    if P.get("STAMP"): g.I("s_waitcnt vmcnt(0)")
    stamp_flush(g, 18, 20, 0, 24, 40)

def k1_mlp(g):
    SSV,SW1,SW2,STAB=24,28,32,36
    srd(g,SSV,4,N*1024); srd(g,SW1,14,128*256); srd(g,SW2,16,128*768); srd(g,STAB,18,TAB_SZ,TAB_OFF)
    WA=2; WB=68; XA=132; DD=180
    VT=228
    vq,vj,va1,va2,va2b,vs,vh,vhr,vp=228,229,230,231,232,233,234,235,236
    g.I("v_and_b32 v1, 63, v0")
    g.I("v_lshrrev_b32 v%d, 4, v1", vq)
    g.I("v_and_b32 v%d, 15, v0", vj)
    g.I("s_lshl_b32 s40, s20, 6")
    g.I("v_lshl_add_u32 v%d, v%d, 2, s40", va1, vj)
    g.I("v_mov_b32 v%d, v%d", vh, va1)
    g.I("v_mul_u32_u24 v1, %d, v%d", 8*768, vq)
    g.I("v_add_u32 v%d, v1, v%d", va2, va1)
    g.I("v_add_u32 v%d, 3072, v%d", va2b, va2)
    g.I("v_lshl_add_u32 v%d, v%d, 11, v%d", va1, vq, va1)
    for ks in range(4):
        g.I("s_mov_b32 s%d, %d", 44+ks, ks*8192)
        g.I("s_mov_b32 s%d, %d", 48+ks, ks*24576)
    g.I("s_sub_u32 s41, s2, %d", C)
    g.I("s_mul_i32 s41, s41, %d", T*16)
    g.I("v_add_u32 v1, s41, v%d", vj)
    g.I("v_lshlrev_b32 v1, 10, v1")
    g.I("v_lshl_add_u32 v%d, v%d, 4, v1", vs, vq)
    for t in range(T): g.I("s_mov_b32 s%d, %d", 52+t, t*16384)
    g.I("s_mov_b32 s56, 0x05040100")
    g.I("s_mov_b32 s57, 0x07060302")
    issued=[0]
    def wload(f):
        sect,ks=f//4,f%4
        for i in range(8):
            p=i>>1
            dst = (WA+4*f+p+1) if (i&1)==0 else (WB+4*f+p)
            if sect==0:
                g.I("buffer_load_dword v%d, v%d, s[%d:%d], s%d offen offset:%d", dst, va1, SW1,SW1+3, 44+ks, i*256)
            else:
                va = va2 if i<4 else va2b
                g.I("buffer_load_dword v%d, v%d, s[%d:%d], s%d offen offset:%d", dst, va, SW2,SW2+3, 48+ks, (i&3)*768+(sect-1)*256)
            issued[0]+=1
    def wperm(f):
        for p in range(4):
            a=WA+4*f+p; b=WB+4*f+p
            g.I("v_perm_b32 v%d, v%d, v%d, s56", a, b, a+1)
            g.I("v_perm_b32 v%d, v%d, v%d, s57", b, b, a+1)
    def wait_done(n): g.I("s_waitcnt vmcnt(%d)", issued[0]-n)
    for f in range(4): wload(f)
    for t in range(T):
        for ks in range(4):
            g.I("buffer_load_dwordx4 %s, v%d, s[%d:%d], s%d offen offset:%d", vr(XA+16*t+4*ks,4), vs, SSV,SSV+3, 52+t, 64*ks)
            issued[0]+=1
    nS=issued[0]
    wload(4); wload(5)
    done_w={}
    g.I("v_mul_u32_u24 v1, %d, v%d", 4*HS, vq)
    g.I("v_add_u32 v%d, v1, v%d", vp, vh)
    g.I("v_mul_u32_u24 v1, %d, v%d", HS, vj)
    g.I("v_lshl_add_u32 v%d, v%d, 4, v1", vhr, vq)
    g.I("v_mul_u32_u24 v1, 3072, v%d", vq)
    g.I("v_add_u32 v%d, v1, v%d", vh, vh)
    vhw=vp
    for f in range(4):
        wait_done(8*(f+1)); wperm(f)
        if f<2: pass
    base=nS
    for f in range(6,10): wload(f)
    wait_done(nS)
    stamp(g)
    for ks in range(4):
        for t in range(T):
            for h,Wb in enumerate((WA,WB)):
                d=DD+8*t+4*h
                g.I("v_mfma_f32_16x16x32_bf16 %s, %s, %s, %s", vr(d,4), vr(XA+16*t+4*ks,4), vr(Wb+4*ks,4), "0" if ks==0 else vr(d,4))
    for f in range(4,6):
        wait_done(base+8*(f-3)); wperm(f)
    for f in range(10,12): wload(f)
    g.I("s_mov_b32 s58, 0x%x", f2u(-1.4426950408889634))
    tt=204
    for t in range(T):
        for r in range(4):
            d0=DD+8*t+r; d1=d0+4
            x0,x1,e0,e1=tt,tt+1,tt+2,tt+3
            g.I("v_cvt_pk_bf16_f32 v%d, v%d, v%d", x1, d0, d1)
            g.I("v_lshlrev_b32 v%d, 16, v%d", x0, x1)
            g.I("v_and_b32 v%d, 0xffff0000, v%d", x1, x1)
            g.I("v_mul_f32 v%d, s58, v%d", e0, x0)
            g.I("v_mul_f32 v%d, s58, v%d", e1, x1)
            g.I("v_exp_f32 v%d, v%d", e0, e0)
            g.I("v_exp_f32 v%d, v%d", e1, e1)
            g.I("v_add_f32 v%d, 1.0, v%d", e0, e0)
            g.I("v_add_f32 v%d, 1.0, v%d", e1, e1)
            g.I("v_rcp_f32 v%d, v%d", e0, e0)
            g.I("v_rcp_f32 v%d, v%d", e1, e1)
            g.I("v_mul_f32 v%d, v%d, v%d", x0, x0, e0)
            g.I("v_mul_f32 v%d, v%d, v%d", x1, x1, e1)
            g.I("v_cvt_pk_bf16_f32 v%d, v%d, v%d", d0, x0, x1)
            g.I("ds_write_b32 v%d, v%d offset:%d", vhw, d0, L_H+t*16*HS+r*HS)
            tt = 204 + ((tt-204+4) % 16)
        if t==0:
            for f in range(6,8):
                wait_done(base+8*(f-3)); wperm(f)
            for f in range(12,14): wload(f)
        if t==1:
            for f in range(8,10):
                wait_done(base+8*(f-3)); wperm(f)
            for f in range(14,16): wload(f)
    vrow,vo1,vo2,vo3=237,238,239,240
    g.I("v_lshrrev_b32 v%d, 4, v0", vrow)
    g.I("v_add_u32 v1, s41, v%d", vrow)
    g.I("v_lshlrev_b32 v%d, 10, v1", vo1)
    g.I("v_lshl_add_u32 v%d, v%d, 4, v%d", vo1, vj, vo1)
    g.I("v_mul_u32_u24 v%d, 1280, v1", vo2)
    g.I("v_lshl_add_u32 v%d, v%d, 4, v%d", vo2, vj, vo2)
    g.I("v_mul_u32_u24 v%d, 768, v%d", vo3, vrow)
    g.I("v_lshl_add_u32 v%d, v%d, 4, v%d", vo3, vj, vo3)
    VV=[WA+0,WA+4,WA+8,WA+12,WB+0,WB+4,WB+8,WB+12,244]
    g.I("s_waitcnt lgkmcnt(0)")
    stamp(g)
    g.I("s_barrier")
    for f in range(10,12):
        wait_done(base+8*(f-3)); wperm(f)
    for t in range(T):
        for x in range(3):
            g.I("buffer_load_dwordx4 %s, v%d, s[%d:%d], s%d offen offset:%d", vr(VV[3*t+x],4), vo1, SSV,SSV+3, 52+t, 256*(x+1))
            issued[0]+=1
    for t in range(T):
        for ks in range(4):
            g.I("ds_read_b128 %s, v%d offset:%d", vr(XA+16*t+4*ks,4), vhr, L_H+t*16*HS+64*ks)
    for f in range(12,16):
        wait_done(base+8*(f-3)); wperm(f)
    g.I("s_waitcnt lgkmcnt(0)")
    stamp(g)
    def g2(t):
        db=DD+24*(t&1)
        for ks in range(4):
            for sg in range(3):
                for h,Wb in enumerate((WA,WB)):
                    d=db+8*sg+4*h; f=4*(sg+1)+ks
                    g.I("v_mfma_f32_16x16x32_bf16 %s, %s, %s, %s", vr(d,4), vr(XA+16*t+4*ks,4), vr(Wb+4*f,4), "0" if ks==0 else vr(d,4))
    def g2e(t):
        db=DD+24*(t&1)
        for sg in range(3):
            for r in range(4):
                d0=db+8*sg+r
                g.I("v_cvt_pk_bf16_f32 v%d, v%d, v%d", d0, d0, d0+4)
                g.I("ds_write_b32 v%d, v%d offset:%d", vh, d0, L_P+t*12288+r*768+sg*256)
    for t in range(T):
        g2(t)
        if t>0: g2e(t-1)
    g2e(T-1)
    g.I("s_waitcnt lgkmcnt(0)")
    stamp(g)
    g.I("s_barrier")
    for t in range(T): g.I("s_mov_b32 s%d, %d", 60+t, t*16*1280)
    PH=XA
    for t in range(T):
        for sg in range(3):
            g.I("ds_read_b128 %s, v%d offset:%d", vr(PH+12*t+4*sg,4), vo3, L_P+t*12288+sg*256)
    sm=P["TABSTORE_MOD"]
    for t in range(T):
        g.I("s_waitcnt lgkmcnt(%d)", 3*(T-1-t))
        g.I("buffer_store_dwordx4 %s, v%d, s[%d:%d], s%d offen %s", vr(PH+12*t,4), vo2, STAB,STAB+3, 60+t, sm)
        g.I("buffer_store_dwordx4 %s, v%d, s[%d:%d], s%d offen offset:1024 %s", vr(PH+12*t+8,4), vo2, STAB,STAB+3, 60+t, sm)
        issued[0]+=2
        pv=DD
        for d in range(4):
            g.I("v_lshlrev_b32 v%d, 16, v%d", pv+2*d, PH+12*t+4+d)
            g.I("v_and_b32 v%d, 0xffff0000, v%d", pv+2*d+1, PH+12*t+4+d)
        for x in range(3):
            nv = base+8*12 + 3*t+x+1
            wait_done(nv)
            vv=VV[3*t+x]; u=DD+8+8*(x&1)
            for d in range(4):
                g.I("v_lshlrev_b32 v%d, 16, v%d", u+2*d, vv+d)
                g.I("v_and_b32 v%d, 0xffff0000, v%d", u+2*d+1, vv+d)
            for i in range(8): g.I("v_mul_f32 v%d, v%d, v%d", u+i, u+i, pv+i)
            for d in range(4): g.I("v_cvt_pk_bf16_f32 v%d, v%d, v%d", vv+d, u+2*d, u+2*d+1)
            g.I("buffer_store_dwordx4 %s, v%d, s[%d:%d], s%d offen offset:%d %s", vr(vv,4), vo2, STAB,STAB+3, 60+t, 256*(x+1), sm)
            issued[0]+=1
    stamp(g)
    if P.get("STAMP"): g.I("s_waitcnt vmcnt(0)")
    stamp_flush(g, 18, 20, 0, 24, 180)
    g.I("s_endpgm")

def k1(g):
    g.raw(".p2align 8"); g.L("painn_k1_kernel")
    g.I("s_cmp_ge_u32 s2, %d", NWG1)
    g.I("s_cbranch_scc1 K1_END")
    g.I("s_load_dwordx4 s[4:7], s[0:1], 0")
    g.I("s_load_dwordx4 s[8:11], s[0:1], 16")
    g.I("s_load_dwordx4 s[12:15], s[0:1], 32")
    g.I("s_load_dwordx2 s[16:17], s[0:1], 48")
    g.I("s_load_dwordx2 s[18:19], s[0:1], 80")
    g.I("v_lshrrev_b32 v1, 6, v0")
    g.I("v_readfirstlane_b32 s20, v1")
    g.I("s_waitcnt lgkmcnt(0)")
    stamp_begin(86); stamp(g)
    g.I("s_cmp_lt_u32 s2, %d", C)
    g.I("s_cbranch_scc1 K1_EDGE")
    k1_mlp(g)
    St.n=1
    k1_edge(g)
    g.L("K1_END")
    g.I("s_endpgm")

L2_A=0; L2_RL=32768; L2_W=33792; L2_G=39936; LDS2=40960
def k2(g):
    NBUF=P["NBUF"]
    g.raw(".p2align 8"); g.L("painn_k2_kernel")
    g.I("s_cmp_ge_u32 s2, %d", NB)
    g.I("s_cbranch_scc1 K2_END")
    g.I("s_load_dwordx2 s[4:5], s[0:1], 0")
    g.I("s_load_dwordx4 s[8:11], s[0:1], 56")
    g.I("s_load_dwordx2 s[12:13], s[0:1], 80")
    SSV,SWR,SOUT,STAB,SREC,SOFF=16,20,24,28,32,36
    ACC=2
    AF=34
    VO=50
    FR=58
    DD=66
    WW=90
    MISC=102
    BB=112
    vlane,vq,vj16,vsvo,vI,vCnt,vBase,vone,vwl,vtmp=range(102,112)
    g.I("v_lshrrev_b32 v1, 6, v0")
    g.I("v_and_b32 v%d, 63, v0", vlane)
    g.I("v_readfirstlane_b32 s3, v1")
    g.I("v_lshrrev_b32 v%d, 4, v%d", vq, vlane)
    g.I("v_and_b32 v1, 15, v0")
    g.I("v_lshlrev_b32 v%d, 4, v1", vj16)
    g.I("v_and_b32 v1, 31, v0")
    g.I("s_lshl_b32 s14, s3, 5")
    g.I("v_add_u32 v1, s14, v1")
    g.I("v_lshlrev_b32 v%d, 2, v1", vtmp)
    g.I("s_lshl_b32 s15, s2, 9")
    g.I("s_waitcnt lgkmcnt(0)")
    stamp_begin(64); stamp(g)
    srd(g,SOFF,12,OFFS_SZ,OFFS_OFF)
    g.I("buffer_load_dword v%d, v%d, s[%d:%d], s15 offen", vCnt, vtmp, SOFF,SOFF+3)
    srd(g,SWR,8,4*768); srd(g,SSV,4,N*1024)
    g.I("v_mul_u32_u24 v%d, 768, v%d", vtmp, vq)
    g.I("v_add_u32 v%d, v%d, v%d", vtmp, vtmp, vj16)
    g.I("s_lshl_b32 s14, s3, 8")
    WT=DD
    g.I("buffer_load_dwordx4 %s, v%d, s[%d:%d], s14 offen", vr(WT,4), vtmp, SWR,SWR+3)
    g.I("s_lshl_b32 s40, s2, 4")
    g.I("s_lshl_b32 s41, s3, 2")
    g.I("s_add_u32 s40, s40, s41")
    g.I("v_add_u32 v%d, s40, v%d", vsvo, vq)
    g.I("v_lshlrev_b32 v%d, 10, v%d", vsvo, vsvo)
    g.I("v_add_u32 v%d, v%d, v%d", vsvo, vsvo, vj16)
    SVT=AF
    for s in range(4):
        g.I("buffer_load_dwordx4 %s, v%d, s[%d:%d], 0 offen offset:%d", vr(SVT+4*s,4), vsvo, SSV,SSV+3, 256*s)
    srd(g,SREC,12,REC_SZ,REC_OFF); srd(g,STAB,12,TAB_SZ,TAB_OFF); srd(g,SOUT,10,N*1024)
    g.I("v_and_b32 v%d, 15, v1", vBase)
    g.I("v_lshrrev_b32 v1, 4, v1")
    g.I("v_lshl_add_u32 v%d, v%d, 3, v1", vBase, vBase)
    g.I("v_cmp_gt_u32 vcc, %d, v%d", C, vBase)
    g.I("s_mov_b64 s[42:43], vcc")
    g.I("s_mov_b32 s44, %d", EC)
    g.I("v_mul_lo_u32 v%d, v%d, s44", vBase, vBase)
    g.I("v_lshrrev_b32 v%d, 5, v%d", vI, vlane)
    g.I("v_mov_b32 v%d, 1", vone)
    g.I("s_mov_b32 s46, 0x05040100")
    g.I("s_mov_b32 s47, 0x07060302")
    g.I("s_mov_b32 s48, 0x%x", OOB)
    Z=VO
    def zero_fill():
        for i in range(4): g.I("v_mov_b32 v%d, 0", Z+i)
        g.I("v_lshlrev_b32 v%d, 4, v0", Z+4)
        g.I("v_lshlrev_b32 v%d, 2, v0", Z+5)
        g.I("v_mov_b32 v%d, s48", Z+6)
        for i in range(8): g.I("ds_write_b128 v%d, %s offset:%d", Z+4, vr(Z,4), L2_A+4096*i)
        g.I("ds_write_b32 v%d, v%d offset:%d", Z+5, Z+6, L2_RL)
        g.I("ds_write_b128 v%d, %s offset:%d", Z, vr(Z,4), L2_G)
        g.I("ds_write_b32 v%d, v%d offset:%d", Z, Z, L2_G+16)
    zero_fill()
    g.I("s_waitcnt vmcnt(5)")
    stamp(g)
    g.I("v_and_b32 v1, 0xffff, v%d", vCnt)
    g.I("v_lshrrev_b32 v%d, 16, v%d", vCnt, vCnt)
    g.I("v_cndmask_b32 v%d, 0, v%d, s[42:43]", vCnt, vCnt)
    g.I("v_add_lshl_u32 v%d, v%d, v1, 5", vBase, vBase)
    RC=BB
    for r in range(2):
        g.I("v_add_u32 v1, %d, v%d", 2*r, vI)
        g.I("v_lshl_add_u32 v%d, v1, 5, v%d", vtmp, vBase)
        g.I("v_cmp_lt_u32 vcc, v1, v%d", vCnt)
        g.I("v_mov_b32 v1, s48")
        g.I("v_cndmask_b32 v%d, v1, v%d, vcc", RC+8*r+6, vtmp)
        g.I("buffer_load_dwordx4 %s, v%d, s[%d:%d], 0 offen", vr(RC+8*r,4), RC+8*r+6, SREC,SREC+3)
        g.I("buffer_load_dwordx2 %s, v%d, s[%d:%d], 0 offen offset:16", vr(RC+8*r+4,2), RC+8*r+6, SREC,SREC+3)
    g.I("s_cmp_eq_u32 s3, 3")
    g.I("s_cbranch_scc1 K2_WDONE")
    g.I("s_waitcnt vmcnt(8)")
    g.I("s_lshl_b32 s14, s3, 11")
    g.I("v_lshl_add_u32 v1, v%d, 2, v%d", vq, vj16)
    g.I("v_add_u32 v1, s14, v1")
    for d in range(4):
        g.I("v_lshlrev_b32 v%d, 16, v%d", WT+4+2*d, WT+d)
        g.I("v_and_b32 v%d, 0xffff0000, v%d", WT+5+2*d, WT+d)
    for t in range(8): g.I("ds_write_b32 v1, v%d offset:%d", WT+4+t, L2_W+256*t)
    g.L("K2_WDONE")
    g.I("s_waitcnt vmcnt(4)")
    for s in range(4):
        for d in range(4):
            g.I("v_lshlrev_b32 v%d, 16, v%d", ACC+8*s+2*d, SVT+4*s+d)
            g.I("v_and_b32 v%d, 0xffff0000, v%d", ACC+8*s+2*d+1, SVT+4*s+d)
    g.I("s_mov_b64 s[50:51], 0")
    g.I("s_waitcnt lgkmcnt(0)")
    g.I("s_barrier")
    TM=DD
    def process(rc, tag):
        g.I("v_cmp_ne_u32 vcc, s48, v%d", rc+4)
        g.I("v_lshrrev_b32 v%d, 11, v%d", TM, rc+5)
        g.I("s_mov_b64 s[52:53], exec")
        g.I("s_and_b64 exec, exec, vcc")
        g.I("v_mov_b32 v%d, 0", TM+1)
        g.I("s_cbranch_execz %s_ADV", tag)
        g.I("ds_add_rtn_u32 v%d, v%d, v%d offset:%d", TM+1, TM, vone, L2_G)
        gk=TM+4; rh=TM+8; fc=TM+11
        g.I("v_lshlrev_b32 v%d, 16, v%d", gk, rc)
        g.I("v_and_b32 v%d, 0xffff0000, v%d", gk+1, rc)
        g.I("v_lshlrev_b32 v%d, 16, v%d", gk+2, rc+1)
        g.I("v_and_b32 v%d, 0xffff0000, v%d", gk+3, rc+1)
        g.I("v_lshlrev_b32 v%d, 16, v%d", fc, rc+2)
        g.I("v_and_b32 v%d, 0xffff0000, v%d", rh, rc+2)
        g.I("v_lshlrev_b32 v%d, 16, v%d", rh+1, rc+3)
        g.I("v_and_b32 v%d, 0xffff0000, v%d", rh+2, rc+3)
        for k in range(4): g.I("v_mul_f32 v%d, v%d, v%d", gk+k, gk+k, fc)
        pk=TM+12
        g.I("v_cvt_pk_bf16_f32 v%d, v%d, v%d", pk, gk, gk+1)
        g.I("v_cvt_pk_bf16_f32 v%d, v%d, v%d", pk+1, gk+2, gk+3)
        for x in range(3):
            for k in range(4): g.I("v_mul_f32 v%d, v%d, v%d", TM+20+k, gk+k, rh+x)
            g.I("v_cvt_pk_bf16_f32 v%d, v%d, v%d", pk+2+2*x, TM+20, TM+21)
            g.I("v_cvt_pk_bf16_f32 v%d, v%d, v%d", pk+3+2*x, TM+22, TM+23)
        g.I("s_waitcnt lgkmcnt(0)")
        s=TM+1
        g.I("v_cmp_lt_u32 vcc, 63, v%d", s)
        g.I("v_and_b32 v%d, 3, v%d", TM+2, s)
        g.I("v_bfe_u32 v%d, v%d, 2, 3", TM+3, s)
        g.I("v_lshl_or_b32 v%d, v%d, 3, v%d", TM+3, TM+2, TM+3)
        g.I("v_and_or_b32 v%d, v%d, 32, v%d", TM+3, s, TM+3)
        g.I("s_or_b64 s[50:51], s[50:51], vcc")
        g.I("s_andn2_b64 s[52:53], s[52:53], vcc")
        g.I("s_andn2_b64 exec, exec, vcc")
        g.I("s_cbranch_execz %s_ADV", tag)
        g.I("v_lshlrev_b32 v%d, 6, v%d", TM, TM)
        g.I("v_lshl_add_u32 v%d, v%d, 2, v%d", TM, TM+3, TM)
        g.I("ds_write_b32 v%d, v%d offset:%d", TM, rc+4, L2_RL)
        g.I("v_lshrrev_b32 v%d, 3, v%d", TM+2, TM+3)
        g.I("v_lshl_add_u32 v%d, v%d, 8, v%d", TM+2, TM+2, rc+5)
        g.I("v_and_b32 v%d, 7, v%d", TM+3, TM+3)
        g.I("v_lshl_add_u32 v%d, v%d, 1, v%d", TM+2, TM+3, TM+2)
        for m in range(4):
            for kk in range(2):
                g.I("ds_write_b16 v%d, v%d offset:%d", TM+2, pk+2*m+kk, L2_A+m*2048+(2*kk)*16)
                g.I("ds_write_b16_d16_hi v%d, v%d offset:%d", TM+2, pk+2*m+kk, L2_A+m*2048+(2*kk+1)*16)
        g.L("%s_ADV"%tag)
        g.I("s_mov_b64 exec, s[52:53]")
        g.I("v_add_u32 v%d, 2, v%d", vI, vI)
        g.I("s_mov_b64 exec, -1")
    for r in range(2):
        g.I("s_waitcnt vmcnt(%d)", 2-2*r)
        g.I("v_cmp_ne_u32 vcc, s48, v%d", RC+8*r+6)
        g.I("s_andn2_b64 exec, vcc, s[50:51]")
        g.I("s_cbranch_execz K2_GEN")
        process(RC+8*r, "K2_P%d"%r)
    g.L("K2_GEN")
    g.I("s_mov_b64 exec, -1")
    g.I("v_cmp_lt_u32 vcc, v%d, v%d", vI, vCnt)
    g.I("v_lshl_add_u32 v%d, v%d, 5, v%d", RC+6, vI, vBase)
    g.I("s_andn2_b64 exec, vcc, s[50:51]")
    g.I("s_cbranch_execz K2_GENDONE")
    g.I("buffer_load_dwordx4 %s, v%d, s[%d:%d], 0 offen", vr(RC,4), RC+6, SREC,SREC+3)
    g.I("buffer_load_dwordx2 %s, v%d, s[%d:%d], 0 offen offset:16", vr(RC+4,2), RC+6, SREC,SREC+3)
    g.I("s_waitcnt vmcnt(0)")
    process(RC, "K2_PG")
    g.I("s_branch K2_GEN")
    g.L("K2_GENDONE")
    g.I("s_mov_b64 exec, -1")
    g.I("s_waitcnt vmcnt(0)")
    stamp(g)
    g.I("s_cmp_eq_u64 s[50:51], 0")
    g.I("s_cbranch_scc1 K2_NOFLAG")
    g.I("v_mov_b32 v1, 0")
    g.I("ds_write_b32 v1, v%d offset:%d", vone, L2_G+16)
    g.L("K2_NOFLAG")
    g.I("s_waitcnt lgkmcnt(0)")
    g.I("s_barrier")
    g.I("s_lshl_b32 s14, s3, 2")
    g.I("v_mov_b32 v1, s14")
    g.I("ds_read_b32 v%d, v1 offset:%d", TM, L2_G)
    g.I("v_mov_b32 v1, 0")
    g.I("ds_read_b32 v%d, v1 offset:%d", TM+1, L2_G+16)
    g.I("s_lshl_b32 s14, s3, 13")
    g.I("v_lshl_add_u32 v%d, v%d, 4, s14", vtmp, vlane)
    g.I("s_lshl_b32 s14, s3, 8")
    g.I("v_lshl_add_u32 v%d, v%d, 5, s14", vwl, vq)
    g.I("s_waitcnt lgkmcnt(0)")
    g.I("v_readfirstlane_b32 s54, v%d", TM)
    g.I("v_readfirstlane_b32 s55, v%d", TM+1)
    g.I("s_min_u32 s54, s54, 64")
    g.I("s_mov_b32 s56, 0")
    stamp(g)
    g.L("K2_KSTEP")
    g.I("s_cmp_ge_u32 s56, s54")
    g.I("s_cbranch_scc1 K2_KDONE")
    g.I("ds_read_b128 %s, v%d offset:%d", vr(VO,4), vwl, L2_RL)
    g.I("ds_read_b128 %s, v%d offset:%d", vr(VO+4,4), vwl, L2_RL+16)
    for m in range(4): g.I("ds_read_b128 %s, v%d offset:%d", vr(AF+4*m,4), vtmp, L2_A+2048*m)
    g.I("s_waitcnt lgkmcnt(4)")
    for i in range(8): g.I("v_add_u32 v%d, v%d, v%d", VO+i, VO+i, vj16)
    order=[4,0,1,2,3]
    def loads(si):
        sec=order[si]; b=BB+32*(si%NBUF)
        for i in range(8):
            g.I("buffer_load_dwordx4 %s, v%d, s[%d:%d], 0 offen offset:%d", vr(b+4*i,4), VO+i, STAB,STAB+3, 256*sec)
    for si in range(min(NBUF,5)): loads(si)
    nl=min(NBUF,5)
    wsec={0:0,1:1,2:1,3:1,4:2}
    tiles=[(si,t) for si in range(5) for t in range(8)]
    lg=[0]
    def wread(idx):
        si,t=tiles[idx];
        g.I("ds_read_b128 %s, v%d offset:%d", vr(WW+4*(idx%3),4), vj16, L2_W+(wsec[order[si]]*8+t)*256)
    def Pm(idx):
        si,t=tiles[idx]; b=BB+32*(si%NBUF); d=t>>1; sel=46+(t&1); fr=FR+4*(idx&1)
        for p in range(4):
            g.I("v_perm_b32 v%d, v%d, v%d, s%d", fr+p, b+4*(2*p+1)+d, b+4*(2*p)+d, sel)
    def dreg(idx,x=0):
        si,t=tiles[idx]
        if order[si]==4: return DD+12*(idx&1)+4*x
        return DD+4*(idx%3)
    def Mf(idx):
        si,t=tiles[idx]; fr=FR+4*(idx&1)
        if order[si]==4:
            for x in range(3): g.I("v_mfma_f32_16x16x32_bf16 %s, %s, %s, 0", vr(dreg(idx,x),4), vr(AF+4*(x+1),4), vr(fr,4))
        else:
            g.I("v_mfma_f32_16x16x32_bf16 %s, %s, %s, 0", vr(dreg(idx),4), vr(AF,4), vr(fr,4))
    def Fm(idx):
        si,t=tiles[idx]; w=WW+4*(idx%3); sec=order[si]
        if sec==4:
            for k in range(4):
                for x in range(3): g.I("v_fmac_f32 v%d, v%d, v%d", ACC+8*(1+x)+t, w+k, dreg(idx,x)+k)
        else:
            for k in range(4): g.I("v_fmac_f32 v%d, v%d, v%d", ACC+8*sec+t, w+k, dreg(idx)+k)
    nt=len(tiles)
    wread(0); wread(1)
    for idx in range(nt+2):
        if idx<nt:
            si,t=tiles[idx]
            if t==0:
                g.I("s_waitcnt vmcnt(%d)", 8*(nl-1-si))
            Pm(idx)
            if t==7 and nl<5:
                loads(nl); nl+=1
        if idx>=2:
            g.I("s_waitcnt lgkmcnt(%d)", 1 if idx-1<nt else 0)
            Fm(idx-2)
            if idx<nt: wread(idx)
        if idx==0: g.I("s_waitcnt lgkmcnt(2)")
        if idx<nt: Mf(idx)
    g.I("v_add_u32 v%d, 1024, v%d", vtmp, vtmp)
    g.I("v_add_u32 v%d, 128, v%d", vwl, vwl)
    g.I("s_add_u32 s56, s56, 32")
    g.I("s_branch K2_KSTEP")
    g.L("K2_KDONE")
    g.I("s_cmp_eq_u32 s55, 0")
    g.I("s_cbranch_scc1 K2_OUT")
    g.I("s_barrier")
    zero_fill()
    g.I("s_mov_b64 s[50:51], 0")
    g.I("s_waitcnt lgkmcnt(0)")
    g.I("s_barrier")
    g.I("s_branch K2_GEN")
    g.L("K2_OUT")
    stamp(g)
    for s in range(4):
        for d in range(4):
            g.I("v_cvt_pk_bf16_f32 v%d, v%d, v%d", BB+4*s+d, ACC+8*s+2*d, ACC+8*s+2*d+1)
        g.I("buffer_store_dwordx4 %s, v%d, s[%d:%d], 0 offen offset:%d %s", vr(BB+4*s,4), vsvo, SOUT,SOUT+3, 256*s, P["STORE_MOD"])
    if P.get("STAMP"): g.I("s_waitcnt vmcnt(0)")
    stamp_flush(g, 12, 3, 1, 16, 2)
    g.L("K2_END")
    g.I("s_endpgm")
    return BB+32*NBUF

def kd(name, nv, ns):
    acc=(nv+3)//4*4
    return """.amdhsa_kernel %s
  .amdhsa_next_free_vgpr %d
  .amdhsa_next_free_sgpr %d
  .amdhsa_accum_offset %d
  .amdhsa_group_segment_fixed_size 0
  .amdhsa_kernarg_size 88
  .amdhsa_user_sgpr_count 2
  .amdhsa_user_sgpr_kernarg_segment_ptr 1
  .amdhsa_system_sgpr_workgroup_id_x 1
  .amdhsa_float_denorm_mode_32 3
.end_amdhsa_kernel
""" % (name,nv,ns,acc)

g=G()
k1(g)
nv2=k2(g)
body,added=fix_hazards(g.l)
hdr=open("standalone__molecular_angular_painn__graph.s.ref").read().split("; Override")[0]
out=hdr
out+="; @launch kernel=painn_k1_kernel grid=(%d,1,1) block=(256,1,1) lds=%d\n"%(NWG1,LDS1)
out+="; @launch kernel=painn_k2_kernel grid=(%d,1,1) block=(256,1,1) lds=%d\n"%(NB,LDS2)
out+='.amdgcn_target "amdgcn-amd-amdhsa--gfx950"\n.text\n'
out+=".globl painn_k1_kernel\n.type painn_k1_kernel,@function\n.globl painn_k2_kernel\n.type painn_k2_kernel,@function\n"
out+="\n".join(body)+"\n"
out+='.section .rodata,"a"\n.p2align 6\n'+kd("painn_k1_kernel",248,102)+".p2align 6\n"+kd("painn_k2_kernel",nv2,80)
open(sys.argv[1],"w").write(out)
print("wrote",sys.argv[1],"lines",len(body),"auto nops",added,"k2 vgprs",nv2,"LDS1",LDS1)
```

```python
import sys, struct
from asmlib import *

N=10000; E=320000; D=128
NB=625
C=125; EC=2560
T=3
NMLP=(625+T-1)//T
NWG1=C+NMLP
TAB_OFF=0; TAB_SZ=N*1280
REC_OFF=1<<24; REC_SZ=E*32
OFFS_OFF=2<<24; OFFS_SZ=NB*512
OOB=0x7FFFFF00
def f2u(x): return struct.unpack("<I",struct.pack("<f",x))[0]

P = dict(NBUF=2, STORE_MOD="", TABSTORE_MOD="")
for a in sys.argv[2:]:
    k,v=a.split("="); P[k]= int(v) if v.lstrip("-").isdigit() else v

STAMP_OFF=3<<24
class St:
    base=0; n=0
def stamp_begin(base): St.base=base; St.n=0
def stamp(g):
    if not P.get("STAMP"): return
    a=St.base+2*St.n; St.n+=1
    if St.n==1: g.I("s_memtime s[%d:%d]", St.base+14,St.base+15)
    g.I("s_memrealtime s[%d:%d]", a,a+1)
    g.I("s_waitcnt lgkmcnt(0)")
def stamp_flush(g, ws, wave, kidx, sq, v):
    if not P.get("STAMP"): return
    g.I("s_memtime s[%d:%d]", sq,sq+1)
    stamp(g)
    g.I("s_sub_u32 s%d, s%d, s%d", St.base+14, sq, St.base+14)
    g.I("s_mov_b64 exec, -1")
    srd(g, sq, ws, 1<<22, STAMP_OFF+kidx*(1<<22))
    for i in range(8):
        if i<St.n or i==7: g.I("v_mov_b32 v%d, s%d", v+i, St.base+2*i)
        else: g.I("v_mov_b32 v%d, 0", v+i)
    g.I("s_lshl_b32 s%d, s2, 2", St.base)
    g.I("s_add_u32 s%d, s%d, s%d", St.base, St.base, wave)
    g.I("s_lshl_b32 s%d, s%d, 5", St.base, St.base)
    g.I("v_mov_b32 v%d, s%d", v+8, St.base)
    g.I("buffer_store_dwordx4 %s, v%d, s[%d:%d], 0 offen", vr(v,4), v+8, sq, sq+3)
    g.I("buffer_store_dwordx4 %s, v%d, s[%d:%d], 0 offen offset:16", vr(v+4,4), v+8, sq, sq+3)

def srd(g, d, base, size, off=0):
    if off:
        g.I("s_add_u32 s%d, s%d, 0x%x", d, base, off)
        g.I("s_addc_u32 s%d, s%d, 0", d+1, base+1)
    else:
        g.I("s_mov_b32 s%d, s%d", d, base)
        g.I("s_mov_b32 s%d, s%d", d+1, base+1)
    g.I("s_mov_b32 s%d, 0x%x", d+2, size)
    g.I("s_mov_b32 s%d, 0x20000", d+3)

L_CNT=0; L_SCAN=4096; L_LIST=4224; L_POS=14464; L_EDGE_END=L_POS+61440
HS=272; L_H=0; L_P=T*16*HS; L_MLP_END=L_P+T*16*768
LDS1=max(L_EDGE_END,L_MLP_END)

def bf_round1(g, d, s, tmp=None):
    g.I("v_cvt_pk_bf16_f32 v%d, v%d, v%d", d, s, s)
    g.I("v_lshlrev_b32 v%d, 16, v%d", d, d)

def pos_addr(g, a, sh, n, sbase):
    g.I("v_mad_u32_u24 v%d, v%d, 6, s%d", a, n, sbase)
    g.I("v_lshlrev_b32 v%d, 3, v%d", sh, a)
    g.I("v_and_b32 v%d, -4, v%d", a, a)

def pos_unpack(g, x,y,z, w0,w1,sh):
    g.I("v_alignbit_b32 v%d, v%d, v%d, v%d", y, w1, w0, sh)
    g.I("v_lshrrev_b32 v%d, v%d, v%d", z, sh, w1)
    g.I("v_lshlrev_b32 v%d, 16, v%d", x, y)
    g.I("v_and_b32 v%d, 0xffff0000, v%d", y, y)
    g.I("v_lshlrev_b32 v%d, 16, v%d", z, z)

def k1_edge(g):
    g.L("K1_EDGE")
    SPOS,SSRC,SDST,SREC,SOFF=24,28,32,36,40
    MASK=44
    srd(g,SPOS,6,60000); srd(g,SSRC,8,E*4); srd(g,SDST,10,E*4)
    srd(g,SREC,18,REC_SZ,REC_OFF); srd(g,SOFF,18,OFFS_SZ,OFFS_OFF)
    g.I("s_load_dwordx2 s[72:73], s[12:13], 0")
    g.I("v_and_b32 v1, 63, v0")
    g.I("v_lshlrev_b32 v1, 4, v1")
    g.I("v_lshlrev_b32 v2, 4, v0")
    g.I("v_lshlrev_b32 v3, 3, v0")
    g.I("s_mul_i32 s64, s20, 15360")
    for grp in range(4):
        g.I("s_add_u32 s65, s64, %d", grp*4096)
        g.I("s_add_u32 s66, s65, %d", L_POS)
        g.I("s_mov_b32 m0, s66")
        g.I("s_nop 0")
        for i in range(4*grp, min(4*grp+4,15)):
            g.I("buffer_load_dwordx4 v1, s[%d:%d], s65 offen offset:%d lds", SPOS,SPOS+3,(i&3)*1024)
    g.I("s_mul_i32 s66, s2, %d", EC*4)
    g.I("s_add_u32 s67, s66, 4096")
    g.I("s_add_u32 s68, s66, 8192")
    VS,VD,VR=10,20,30
    for (b,S) in ((VS,SSRC),(VD,SDST)):
        g.I("buffer_load_dwordx4 %s, v2, s[%d:%d], s66 offen", vr(b,4),S,S+3)
        g.I("buffer_load_dwordx4 %s, v2, s[%d:%d], s67 offen", vr(b+4,4),S,S+3)
        g.I("buffer_load_dwordx2 %s, v3, s[%d:%d], s68 offen", vr(b+8,2),S,S+3)
    for i in range(4,8): g.I("v_mov_b32 v%d, 0", i)
    g.I("ds_write_b128 v2, v[4:7] offset:%d", L_CNT)
    g.I("v_mov_b32 v8, 1")
    g.I("v_mov_b32 v9, 0x200")
    g.I("s_mov_b32 s69, %d", L_POS)
    g.I("s_mov_b32 s70, 0x%x", f2u(25.25))
    g.I("s_waitcnt vmcnt(0) lgkmcnt(0)")
    stamp(g)
    g.I("s_barrier")
    W=40
    for b in range(2):
        for e in range(5):
            r=W+6*e; ei=5*b+e
            pos_addr(g, 70, r+4, VS+ei, 69)
            g.I("ds_read2_b32 %s, v70 offset0:0 offset1:1", vr(r,2))
            pos_addr(g, 71, r+5, VD+ei, 69)
            g.I("ds_read2_b32 %s, v71 offset0:0 offset1:1", vr(r+2,2))
        for e in range(5):
            r=W+6*e; ei=5*b+e
            g.I("s_waitcnt lgkmcnt(%d)", (8-2*e) + e)
            pos_unpack(g,72,73,74, r,r+1,r+4)
            pos_unpack(g,75,76,77, r+2,r+3,r+5)
            g.I("v_sub_f32 v72, v72, v75")
            g.I("v_sub_f32 v73, v73, v76")
            g.I("v_sub_f32 v74, v74, v77")
            g.I("v_mul_f32 v72, v72, v72")
            g.I("v_fmac_f32 v72, v73, v73")
            g.I("v_fmac_f32 v72, v74, v74")
            g.I("v_lshrrev_b32 v78, 2, v%d", VD+ei)
            g.I("v_and_b32 v78, -4, v78")
            m=MASK+2*ei
            g.I("v_cmp_nge_f32 s[%d:%d], v72, s70", m,m+1)
            g.I("v_cmp_class_f32 vcc, v72, v9")
            g.I("s_or_b64 s[%d:%d], s[%d:%d], vcc", m,m+1,m,m+1)
            g.I("s_mov_b64 exec, s[%d:%d]", m,m+1)
            g.I("ds_add_rtn_u32 v%d, v78, v8 offset:%d", VR+ei, L_CNT)
            g.I("s_mov_b64 exec, -1")
    g.I("s_waitcnt lgkmcnt(0)")
    stamp(g)
    g.I("s_barrier")
    g.I("s_cmp_lg_u32 s20, 0")
    g.I("s_cbranch_scc1 K1E_SCAN_DONE")
    g.I("v_mul_u32_u24 v70, 48, v0")
    for i in range(3): g.I("ds_read_b128 %s, v70 offset:%d", vr(40+4*i,4), L_CNT+16*i)
    g.I("s_waitcnt lgkmcnt(0)")
    g.I("v_add_u32 v71, v40, v41")
    for i in range(2,12): g.I("v_add_u32 v71, v71, v%d", 40+i)
    g.I("v_mov_b32 v72, v71")
    for sh in (1,2,4,8):
        g.I("v_add_u32_dpp v72, v72, v72 row_shr:%d row_mask:0xf bank_mask:0xf bound_ctrl:0", sh)
    g.I("v_add_u32_dpp v72, v72, v72 row_bcast:15 row_mask:0xa bank_mask:0xf")
    g.I("v_add_u32_dpp v72, v72, v72 row_bcast:31 row_mask:0xc bank_mask:0xf")
    g.I("v_sub_u32 v73, v72, v71")
    for i in range(12):
        g.I("v_lshl_or_b32 v%d, v%d, 16, v73", 52+i, 40+i)
        if i<11: g.I("v_add_u32 v73, v73, v%d", 40+i)
    for i in range(3): g.I("ds_write_b128 v70, %s offset:%d", vr(52+4*i,4), L_CNT+16*i)
    g.I("v_readlane_b32 s71, v72, 63")
    g.I("v_mov_b32 v74, 0")
    g.I("v_mov_b32 v73, s71")
    g.I("ds_write_b32 v74, v73 offset:%d", L_SCAN)
    g.I("s_waitcnt lgkmcnt(0)")
    g.L("K1E_SCAN_DONE")
    g.I("s_barrier")
    stamp(g)
    for ei in range(10):
        g.I("v_lshrrev_b32 v78, 2, v%d", VD+ei)
        g.I("v_and_b32 v78, -4, v78")
        g.I("ds_read_b32 v%d, v78 offset:%d", 40+ei, L_CNT)
    g.I("v_lshlrev_b32 v70, 2, v0")
    for i in range(3): g.I("ds_read_b32 v%d, v70 offset:%d", 50+i, L_CNT+1024*i)
    g.I("v_mov_b32 v74, 0")
    g.I("ds_read_b32 v53, v74 offset:%d", L_SCAN)
    g.I("s_and_b32 s64, s2, 7")
    g.I("s_lshl_b32 s64, s64, 6")
    g.I("s_lshr_b32 s65, s2, 3")
    g.I("s_lshl_b32 s65, s65, 2")
    g.I("s_add_u32 s64, s64, s65")
    g.I("s_add_u32 s65, s64, 131072")
    g.I("s_add_u32 s66, s64, 262144")
    g.I("v_lshlrev_b32 v71, 9, v0")
    g.I("s_waitcnt lgkmcnt(0)")
    for i in range(3):
        g.I("buffer_store_dword v%d, v71, s[%d:%d], s%d offen", 50+i, SOFF,SOFF+3, 64+i)
    g.I("v_readfirstlane_b32 s71, v53")
    for ei in range(10):
        m=MASK+2*ei
        g.I("v_and_b32 v%d, 0xffff, v%d", 40+ei, 40+ei)
        g.I("v_add_lshl_u32 v%d, v%d, v%d, 2", 40+ei, 40+ei, VR+ei)
        g.I("v_lshl_or_b32 v72, v%d, 16, v%d", VD+ei, VS+ei)
        g.I("s_mov_b64 exec, s[%d:%d]", m,m+1)
        g.I("ds_write_b32 v%d, v72 offset:%d", 40+ei, L_LIST)
        g.I("s_mov_b64 exec, -1")
    g.I("s_lshl_b32 s74, s72, 16")
    g.I("s_and_b32 s75, s72, 0xffff0000")
    g.I("s_lshl_b32 s76, s73, 16")
    g.I("s_and_b32 s77, s73, 0xffff0000")
    g.I("s_mul_i32 s78, s2, %d", EC*32)
    g.I("s_mov_b32 s79, 0")
    g.I("s_mov_b32 s80, 1280")
    g.I("s_mov_b32 s81, 0x%x", f2u(5.0))
    g.I("v_mov_b32 v10, v0")
    g.I("s_waitcnt lgkmcnt(0)")
    g.I("s_barrier")
    stamp(g)
    g.L("K1E_LOOP")
    g.I("s_cmp_ge_u32 s79, s71")
    g.I("s_cbranch_scc1 K1E_FIN")
    g.I("v_cmp_gt_u32 vcc, s71, v10")
    g.I("s_and_saveexec_b64 s[82:83], vcc")
    g.I("s_cbranch_execz K1E_NEXT")
    g.I("v_lshlrev_b32 v11, 2, v10")
    g.I("ds_read_b32 v12, v11 offset:%d", L_LIST)
    g.I("s_waitcnt lgkmcnt(0)")
    g.I("v_and_b32 v13, 0xffff, v12")
    g.I("v_lshrrev_b32 v14, 16, v12")
    pos_addr(g, 15, 16, 13, 69)
    g.I("ds_read2_b32 v[20:21], v15 offset0:0 offset1:1")
    pos_addr(g, 17, 18, 14, 69)
    g.I("ds_read2_b32 v[22:23], v17 offset0:0 offset1:1")
    g.I("v_mul_u32_u24 v44, s80, v13")
    g.I("v_bfe_u32 v45, v14, 2, 2")
    g.I("v_lshlrev_b32 v45, 13, v45")
    g.I("v_and_b32 v46, 3, v14")
    g.I("v_lshl_or_b32 v45, v46, 6, v45")
    g.I("s_waitcnt lgkmcnt(0)")
    pos_unpack(g,24,25,26, 20,21,16)
    pos_unpack(g,27,28,29, 22,23,18)
    g.I("v_sub_f32 v24, v24, v27")
    g.I("v_sub_f32 v25, v25, v28")
    g.I("v_sub_f32 v26, v26, v29")
    g.I("v_cvt_pk_bf16_f32 v27, v24, v25")
    g.I("v_cvt_pk_bf16_f32 v28, v26, v26")
    g.I("v_lshlrev_b32 v24, 16, v27")
    g.I("v_and_b32 v25, 0xffff0000, v27")
    g.I("v_lshlrev_b32 v26, 16, v28")
    g.I("v_mul_f32 v27, v24, v24")
    g.I("v_mul_f32 v28, v25, v25")
    g.I("v_mul_f32 v29, v26, v26")
    g.I("v_cvt_pk_bf16_f32 v27, v27, v28")
    g.I("v_cvt_pk_bf16_f32 v29, v29, v29")
    g.I("v_and_b32 v28, 0xffff0000, v27")
    g.I("v_lshlrev_b32 v27, 16, v27")
    g.I("v_lshlrev_b32 v29, 16, v29")
    g.I("v_add_f32 v27, v27, v28")
    g.I("v_add_f32 v27, v27, v29")
    bf_round1(g,27,27)
    g.I("v_add_f32 v27, 0x%x, v27", f2u(1e-8))
    bf_round1(g,27,27)
    g.I("v_sqrt_f32 v27, v27")
    bf_round1(g,27,27)
    g.I("v_rcp_f32 v28, v27")
    for k in range(4): g.I("v_mul_f32 v%d, s%d, v27", 30+k, 74+k)
    g.I("v_mul_f32 v34, 0x%x, v27", f2u(3.141592653589793))
    g.I("v_cvt_pk_bf16_f32 v30, v30, v31")
    g.I("v_cvt_pk_bf16_f32 v32, v32, v33")
    bf_round1(g,34,34)
    g.I("v_and_b32 v31, 0xffff0000, v30")
    g.I("v_lshlrev_b32 v30, 16, v30")
    g.I("v_and_b32 v33, 0xffff0000, v32")
    g.I("v_lshlrev_b32 v32, 16, v32")
    g.I("v_mul_f32 v34, 0x%x, v34", f2u(0.2))
    bf_round1(g,34,34)
    for k in range(5): g.I("v_mul_f32 v%d, 0.15915494, v%d", 30+k, 30+k)
    for k in range(5): g.I("v_fract_f32 v%d, v%d", 30+k, 30+k)
    for k in range(4): g.I("v_sin_f32 v%d, v%d", 30+k, 30+k)
    g.I("v_cos_f32 v34, v34")
    g.I("v_mul_f32 v24, v24, v28")
    g.I("v_mul_f32 v25, v25, v28")
    g.I("v_mul_f32 v26, v26, v28")
    g.I("v_cvt_pk_bf16_f32 v30, v30, v31")
    g.I("v_cvt_pk_bf16_f32 v32, v32, v33")
    bf_round1(g,34,34)
    g.I("v_and_b32 v31, 0xffff0000, v30")
    g.I("v_lshlrev_b32 v30, 16, v30")
    g.I("v_and_b32 v33, 0xffff0000, v32")
    g.I("v_lshlrev_b32 v32, 16, v32")
    g.I("v_add_f32 v34, 1.0, v34")
    bf_round1(g,34,34)
    for k in range(4): g.I("v_mul_f32 v%d, v%d, v28", 30+k, 30+k)
    g.I("v_mul_f32 v34, 0.5, v34")
    g.I("v_mul_f32 v35, 0, v27")
    g.I("v_cmp_gt_f32 vcc, s81, v27")
    g.I("v_cvt_pk_bf16_f32 v40, v30, v31")
    g.I("v_cvt_pk_bf16_f32 v41, v32, v33")
    g.I("v_cndmask_b32 v34, v35, v34, vcc")
    g.I("v_cvt_pk_bf16_f32 v43, v25, v26")
    g.I("v_cvt_pk_bf16_f32 v42, v34, v24")
    g.I("v_cmp_o_f32 s[84:85], v35, v35")
    g.I("s_andn2_b64 s[84:85], s[84:85], vcc")
    g.I("v_mov_b32 v46, 0x%x", OOB)
    g.I("v_lshlrev_b32 v11, 5, v10")
    g.I("v_cndmask_b32 v44, v44, v46, s[84:85]")
    g.I("buffer_store_dwordx4 v[40:43], v11, s[%d:%d], s78 offen %s", SREC,SREC+3, P["TABSTORE_MOD"])
    g.I("buffer_store_dwordx2 v[44:45], v11, s[%d:%d], s78 offen offset:16 %s", SREC,SREC+3, P["TABSTORE_MOD"])
    g.L("K1E_NEXT")
    g.I("s_mov_b64 exec, -1")
    g.I("v_add_u32 v10, 256, v10")
    g.I("s_add_u32 s79, s79, 256")
    g.I("s_branch K1E_LOOP")
    g.L("K1E_FIN")
    if P.get("STAMP"): g.I("s_waitcnt vmcnt(0)")
    stamp_flush(g, 18, 20, 0, 24, 40)

def k1_mlp(g):
    SSV,SW1,SW2,STAB=24,28,32,36
    srd(g,SSV,4,N*1024); srd(g,SW1,14,128*256); srd(g,SW2,16,128*768); srd(g,STAB,18,TAB_SZ,TAB_OFF)
    WA=2; WB=68; XA=132; DD=180
    VT=228
    vq,vj,va1,va2,va2b,vs,vh,vhr,vp=228,229,230,231,232,233,234,235,236
    g.I("v_and_b32 v1, 63, v0")
    g.I("v_lshrrev_b32 v%d, 4, v1", vq)
    g.I("v_and_b32 v%d, 15, v0", vj)
    g.I("s_lshl_b32 s40, s20, 6")
    g.I("v_lshl_add_u32 v%d, v%d, 2, s40", va1, vj)
    g.I("v_mov_b32 v%d, v%d", vh, va1)
    g.I("v_mul_u32_u24 v1, %d, v%d", 8*768, vq)
    g.I("v_add_u32 v%d, v1, v%d", va2, va1)
    g.I("v_add_u32 v%d, 3072, v%d", va2b, va2)
    g.I("v_lshl_add_u32 v%d, v%d, 11, v%d", va1, vq, va1)
    for ks in range(4):
        g.I("s_mov_b32 s%d, %d", 44+ks, ks*8192)
        g.I("s_mov_b32 s%d, %d", 48+ks, ks*24576)
    g.I("s_sub_u32 s41, s2, %d", C)
    g.I("s_mul_i32 s41, s41, %d", T*16)
    g.I("v_add_u32 v1, s41, v%d", vj)
    g.I("v_lshlrev_b32 v1, 10, v1")
    g.I("v_lshl_add_u32 v%d, v%d, 4, v1", vs, vq)
    for t in range(T): g.I("s_mov_b32 s%d, %d", 52+t, t*16384)
    g.I("s_mov_b32 s56, 0x05040100")
    g.I("s_mov_b32 s57, 0x07060302")
    issued=[0]
    def wload(f):
        sect,ks=f//4,f%4
        for i in range(8):
            p=i>>1
            dst = (WA+4*f+p+1) if (i&1)==0 else (WB+4*f+p)
            if sect==0:
                g.I("buffer_load_dword v%d, v%d, s[%d:%d], s%d offen offset:%d", dst, va1, SW1,SW1+3, 44+ks, i*256)
            else:
                va = va2 if i<4 else va2b
                g.I("buffer_load_dword v%d, v%d, s[%d:%d], s%d offen offset:%d", dst, va, SW2,SW2+3, 48+ks, (i&3)*768+(sect-1)*256)
            issued[0]+=1
    def wperm(f):
        for p in range(4):
            a=WA+4*f+p; b=WB+4*f+p
            g.I("v_perm_b32 v%d, v%d, v%d, s56", a, b, a+1)
            g.I("v_perm_b32 v%d, v%d, v%d, s57", b, b, a+1)
    def wait_done(n): g.I("s_waitcnt vmcnt(%d)", issued[0]-n)
    for f in range(4): wload(f)
    for t in range(T):
        for ks in range(4):
            g.I("buffer_load_dwordx4 %s, v%d, s[%d:%d], s%d offen offset:%d", vr(XA+16*t+4*ks,4), vs, SSV,SSV+3, 52+t, 64*ks)
            issued[0]+=1
    nS=issued[0]
    wload(4); wload(5)
    done_w={}
    g.I("v_mul_u32_u24 v1, %d, v%d", 4*HS, vq)
    g.I("v_add_u32 v%d, v1, v%d", vp, vh)
    g.I("v_mul_u32_u24 v1, %d, v%d", HS, vj)
    g.I("v_lshl_add_u32 v%d, v%d, 4, v1", vhr, vq)
    g.I("v_mul_u32_u24 v1, 3072, v%d", vq)
    g.I("v_add_u32 v%d, v1, v%d", vh, vh)
    vhw=vp
    for f in range(4):
        wait_done(8*(f+1)); wperm(f)
        if f<2: pass
    base=nS
    for f in range(6,10): wload(f)
    wait_done(nS)
    stamp(g)
    for ks in range(4):
        for t in range(T):
            for h,Wb in enumerate((WA,WB)):
                d=DD+8*t+4*h
                g.I("v_mfma_f32_16x16x32_bf16 %s, %s, %s, %s", vr(d,4), vr(XA+16*t+4*ks,4), vr(Wb+4*ks,4), "0" if ks==0 else vr(d,4))
    for f in range(4,6):
        wait_done(base+8*(f-3)); wperm(f)
    for f in range(10,12): wload(f)
    g.I("s_mov_b32 s58, 0x%x", f2u(-1.4426950408889634))
    tt=204
    for t in range(T):
        for r in range(4):
            d0=DD+8*t+r; d1=d0+4
            x0,x1,e0,e1=tt,tt+1,tt+2,tt+3
            g.I("v_cvt_pk_bf16_f32 v%d, v%d, v%d", x1, d0, d1)
            g.I("v_lshlrev_b32 v%d, 16, v%d", x0, x1)
            g.I("v_and_b32 v%d, 0xffff0000, v%d", x1, x1)
            g.I("v_mul_f32 v%d, s58, v%d", e0, x0)
            g.I("v_mul_f32 v%d, s58, v%d", e1, x1)
            g.I("v_exp_f32 v%d, v%d", e0, e0)
            g.I("v_exp_f32 v%d, v%d", e1, e1)
            g.I("v_add_f32 v%d, 1.0, v%d", e0, e0)
            g.I("v_add_f32 v%d, 1.0, v%d", e1, e1)
            g.I("v_rcp_f32 v%d, v%d", e0, e0)
            g.I("v_rcp_f32 v%d, v%d", e1, e1)
            g.I("v_mul_f32 v%d, v%d, v%d", x0, x0, e0)
            g.I("v_mul_f32 v%d, v%d, v%d", x1, x1, e1)
            g.I("v_cvt_pk_bf16_f32 v%d, v%d, v%d", d0, x0, x1)
            g.I("ds_write_b32 v%d, v%d offset:%d", vhw, d0, L_H+t*16*HS+r*HS)
            tt = 204 + ((tt-204+4) % 16)
        if t==0:
            for f in range(6,8):
                wait_done(base+8*(f-3)); wperm(f)
            for f in range(12,14): wload(f)
        if t==1:
            for f in range(8,10):
                wait_done(base+8*(f-3)); wperm(f)
            for f in range(14,16): wload(f)
    vrow,vo1,vo2,vo3=237,238,239,240
    g.I("v_lshrrev_b32 v%d, 4, v0", vrow)
    g.I("v_add_u32 v1, s41, v%d", vrow)
    g.I("v_lshlrev_b32 v%d, 10, v1", vo1)
    g.I("v_lshl_add_u32 v%d, v%d, 4, v%d", vo1, vj, vo1)
    g.I("v_mul_u32_u24 v%d, 1280, v1", vo2)
    g.I("v_lshl_add_u32 v%d, v%d, 4, v%d", vo2, vj, vo2)
    g.I("v_mul_u32_u24 v%d, 768, v%d", vo3, vrow)
    g.I("v_lshl_add_u32 v%d, v%d, 4, v%d", vo3, vj, vo3)
    VV=[WA+0,WA+4,WA+8,WA+12,WB+0,WB+4,WB+8,WB+12,244]
    g.I("s_waitcnt lgkmcnt(0)")
    stamp(g)
    g.I("s_barrier")
    for f in range(10,12):
        wait_done(base+8*(f-3)); wperm(f)
    for t in range(T):
        for x in range(3):
            g.I("buffer_load_dwordx4 %s, v%d, s[%d:%d], s%d offen offset:%d", vr(VV[3*t+x],4), vo1, SSV,SSV+3, 52+t, 256*(x+1))
            issued[0]+=1
    for t in range(T):
        for ks in range(4):
            g.I("ds_read_b128 %s, v%d offset:%d", vr(XA+16*t+4*ks,4), vhr, L_H+t*16*HS+64*ks)
    for f in range(12,16):
        wait_done(base+8*(f-3)); wperm(f)
    g.I("s_waitcnt lgkmcnt(0)")
    stamp(g)
    def g2(t):
        db=DD+24*(t&1)
        for ks in range(4):
            for sg in range(3):
                for h,Wb in enumerate((WA,WB)):
                    d=db+8*sg+4*h; f=4*(sg+1)+ks
                    g.I("v_mfma_f32_16x16x32_bf16 %s, %s, %s, %s", vr(d,4), vr(XA+16*t+4*ks,4), vr(Wb+4*f,4), "0" if ks==0 else vr(d,4))
    def g2e(t):
        db=DD+24*(t&1)
        for sg in range(3):
            for r in range(4):
                d0=db+8*sg+r
                g.I("v_cvt_pk_bf16_f32 v%d, v%d, v%d", d0, d0, d0+4)
                g.I("ds_write_b32 v%d, v%d offset:%d", vh, d0, L_P+t*12288+r*768+sg*256)
    for t in range(T):
        g2(t)
        if t>0: g2e(t-1)
    g2e(T-1)
    g.I("s_waitcnt lgkmcnt(0)")
    stamp(g)
    g.I("s_barrier")
    for t in range(T): g.I("s_mov_b32 s%d, %d", 60+t, t*16*1280)
    PH=XA
    for t in range(T):
        for sg in range(3):
            g.I("ds_read_b128 %s, v%d offset:%d", vr(PH+12*t+4*sg,4), vo3, L_P+t*12288+sg*256)
    sm=P["TABSTORE_MOD"]
    for t in range(T):
        g.I("s_waitcnt lgkmcnt(%d)", 3*(T-1-t))
        g.I("buffer_store_dwordx4 %s, v%d, s[%d:%d], s%d offen %s", vr(PH+12*t,4), vo2, STAB,STAB+3, 60+t, sm)
        g.I("buffer_store_dwordx4 %s, v%d, s[%d:%d], s%d offen offset:1024 %s", vr(PH+12*t+8,4), vo2, STAB,STAB+3, 60+t, sm)
        issued[0]+=2
        pv=DD
        for d in range(4):
            g.I("v_lshlrev_b32 v%d, 16, v%d", pv+2*d, PH+12*t+4+d)
            g.I("v_and_b32 v%d, 0xffff0000, v%d", pv+2*d+1, PH+12*t+4+d)
        for x in range(3):
            nv = base+8*12 + 3*t+x+1
            wait_done(nv)
            vv=VV[3*t+x]; u=DD+8+8*(x&1)
            for d in range(4):
                g.I("v_lshlrev_b32 v%d, 16, v%d", u+2*d, vv+d)
                g.I("v_and_b32 v%d, 0xffff0000, v%d", u+2*d+1, vv+d)
            for i in range(8): g.I("v_mul_f32 v%d, v%d, v%d", u+i, u+i, pv+i)
            for d in range(4): g.I("v_cvt_pk_bf16_f32 v%d, v%d, v%d", vv+d, u+2*d, u+2*d+1)
            g.I("buffer_store_dwordx4 %s, v%d, s[%d:%d], s%d offen offset:%d %s", vr(vv,4), vo2, STAB,STAB+3, 60+t, 256*(x+1), sm)
            issued[0]+=1
    stamp(g)
    if P.get("STAMP"): g.I("s_waitcnt vmcnt(0)")
    stamp_flush(g, 18, 20, 0, 24, 180)
    g.I("s_endpgm")

def k1(g):
    g.raw(".p2align 8"); g.L("painn_k1_kernel")
    g.I("s_cmp_ge_u32 s2, %d", NWG1)
    g.I("s_cbranch_scc1 K1_END")
    g.I("s_load_dwordx4 s[4:7], s[0:1], 0")
    g.I("s_load_dwordx4 s[8:11], s[0:1], 16")
    g.I("s_load_dwordx4 s[12:15], s[0:1], 32")
    g.I("s_load_dwordx2 s[16:17], s[0:1], 48")
    g.I("s_load_dwordx2 s[18:19], s[0:1], 80")
    g.I("v_lshrrev_b32 v1, 6, v0")
    g.I("v_readfirstlane_b32 s20, v1")
    g.I("s_waitcnt lgkmcnt(0)")
    stamp_begin(86); stamp(g)
    g.I("s_cmp_lt_u32 s2, %d", C)
    g.I("s_cbranch_scc1 K1_EDGE")
    k1_mlp(g)
    St.n=1
    k1_edge(g)
    g.L("K1_END")
    g.I("s_endpgm")

L2_A=0; L2_RL=32768; L2_W=33792; L2_G=39936; LDS2=40960
def k2(g):
    NBUF=P["NBUF"]
    g.raw(".p2align 8"); g.L("painn_k2_kernel")
    g.I("s_mov_b32 s58, s2")
    if P.get("REMAP",1):
        g.I("s_cmp_ge_u32 s2, 632")
        g.I("s_cbranch_scc1 K2_END")
        g.I("s_and_b32 s3, s2, 7")
        g.I("s_mul_i32 s3, s3, 79")
        g.I("s_lshr_b32 s2, s2, 3")
        g.I("s_add_u32 s2, s2, s3")
    g.I("s_cmp_ge_u32 s2, %d", NB)
    g.I("s_cbranch_scc1 K2_END")
    g.I("s_load_dwordx2 s[12:13], s[0:1], 80")
    g.I("s_load_dwordx2 s[4:5], s[0:1], 0")
    g.I("s_load_dwordx4 s[8:11], s[0:1], 56")
    SSV,SWR,SOUT,STAB,SREC,SOFF=16,20,24,28,32,36
    ACC=2
    AF=34
    VO=50
    FR=58
    DD=66
    WW=90
    vj16,vsvo,vI,vCnt,vBase,vwl=range(98,104)
    vtmp=1
    BB=104
    vlane,vq,vone = FR,FR+1,FR+2
    g.I("v_lshrrev_b32 v1, 6, v0")
    g.I("v_and_b32 v%d, 63, v0", vlane)
    g.I("v_readfirstlane_b32 s3, v1")
    g.I("v_lshrrev_b32 v%d, 4, v%d", vq, vlane)
    g.I("v_and_b32 v1, 15, v0")
    g.I("v_lshlrev_b32 v%d, 4, v1", vj16)
    g.I("v_and_b32 v1, 31, v0")
    g.I("s_lshl_b32 s14, s3, 5")
    g.I("v_add_u32 v1, s14, v1")
    g.I("v_lshlrev_b32 v%d, 2, v1", vwl)
    g.I("s_lshl_b32 s15, s2, 9")
    g.I("s_waitcnt lgkmcnt(0)")
    stamp_begin(64); stamp(g)
    srd(g,SOFF,12,OFFS_SZ,OFFS_OFF)
    g.I("buffer_load_dword v%d, v%d, s[%d:%d], s15 offen", vCnt, vwl, SOFF,SOFF+3)
    srd(g,SWR,8,4*768); srd(g,SSV,4,N*1024)
    g.I("v_mul_u32_u24 v%d, 768, v%d", vwl, vq)
    g.I("v_add_u32 v%d, v%d, v%d", vwl, vwl, vj16)
    g.I("s_lshl_b32 s14, s3, 8")
    WT=AF
    g.I("buffer_load_dwordx4 %s, v%d, s[%d:%d], s14 offen", vr(WT,4), vwl, SWR,SWR+3)
    g.I("s_lshl_b32 s40, s2, 4")
    g.I("s_lshl_b32 s41, s3, 2")
    g.I("s_add_u32 s40, s40, s41")
    g.I("v_add_u32 v%d, s40, v%d", vsvo, vq)
    g.I("v_lshlrev_b32 v%d, 10, v%d", vsvo, vsvo)
    g.I("v_add_u32 v%d, v%d, v%d", vsvo, vsvo, vj16)
    srd(g,SREC,12,REC_SZ,REC_OFF); srd(g,STAB,12,TAB_SZ,TAB_OFF); srd(g,SOUT,10,N*1024)
    g.I("v_and_b32 v%d, 15, v1", vBase)
    g.I("v_lshrrev_b32 v1, 4, v1")
    g.I("v_lshl_add_u32 v%d, v%d, 3, v1", vBase, vBase)
    g.I("v_cmp_gt_u32 vcc, %d, v%d", C, vBase)
    g.I("s_mov_b64 s[42:43], vcc")
    g.I("s_mov_b32 s44, %d", EC)
    g.I("v_mul_lo_u32 v%d, v%d, s44", vBase, vBase)
    g.I("v_lshrrev_b32 v%d, 5, v%d", vI, vlane)
    g.I("s_mov_b32 s46, 0x05040100")
    g.I("s_mov_b32 s47, 0x07060302")
    g.I("s_mov_b32 s48, 0x%x", OOB)
    Z=VO
    def zero_fill():
        for i in range(4): g.I("v_mov_b32 v%d, 0", Z+i)
        g.I("v_lshlrev_b32 v%d, 4, v0", Z+4)
        g.I("v_lshlrev_b32 v%d, 2, v0", Z+5)
        g.I("v_mov_b32 v%d, s48", Z+6)
        g.I("v_mov_b32 v%d, 1", vone)
        for i in range(8): g.I("ds_write_b128 v%d, %s offset:%d", Z+4, vr(Z,4), L2_A+4096*i)
        g.I("ds_write_b32 v%d, v%d offset:%d", Z+5, Z+6, L2_RL)
        g.I("ds_write_b128 v%d, %s offset:%d", Z, vr(Z,4), L2_G)
        g.I("ds_write_b32 v%d, v%d offset:%d", Z, Z, L2_G+16)
    zero_fill()
    g.I("s_waitcnt vmcnt(1)")
    stamp(g)
    g.I("v_and_b32 v1, 0xffff, v%d", vCnt)
    g.I("v_lshrrev_b32 v%d, 16, v%d", vCnt, vCnt)
    g.I("v_cndmask_b32 v%d, 0, v%d, s[42:43]", vCnt, vCnt)
    g.I("v_add_lshl_u32 v%d, v%d, v1, 5", vBase, vBase)
    RC=BB
    for r in range(2):
        g.I("v_add_u32 v1, %d, v%d", 2*r, vI)
        g.I("v_lshl_add_u32 v%d, v1, 5, v%d", vwl, vBase)
        g.I("v_cmp_lt_u32 vcc, v1, v%d", vCnt)
        g.I("v_mov_b32 v1, s48")
        g.I("v_cndmask_b32 v%d, v1, v%d, vcc", RC+8*r+6, vwl)
        g.I("buffer_load_dwordx4 %s, v%d, s[%d:%d], 0 offen", vr(RC+8*r,4), RC+8*r+6, SREC,SREC+3)
        g.I("buffer_load_dwordx2 %s, v%d, s[%d:%d], 0 offen offset:16", vr(RC+8*r+4,2), RC+8*r+6, SREC,SREC+3)
    SVT=ACC+16
    SVL=P.get("SVLATE",1)
    def svloads():
        for s in range(4):
            g.I("buffer_load_dwordx4 %s, v%d, s[%d:%d], 0 offen offset:%d %s", vr(SVT+4*s,4), vsvo, SSV,SSV+3, 256*s, P.get("SVMOD",""))
    if not SVL: svloads()
    g.I("s_cmp_eq_u32 s3, 3")
    g.I("s_cbranch_scc1 K2_WDONE")
    g.I("s_waitcnt vmcnt(%d)", 4 if SVL else 8)
    g.I("s_lshl_b32 s14, s3, 11")
    g.I("v_lshl_add_u32 v1, v%d, 2, v%d", vq, vj16)
    g.I("v_add_u32 v1, s14, v1")
    for d in range(4):
        g.I("v_lshlrev_b32 v%d, 16, v%d", WT+4+2*d, WT+d)
        g.I("v_and_b32 v%d, 0xffff0000, v%d", WT+5+2*d, WT+d)
    for t in range(8): g.I("ds_write_b32 v1, v%d offset:%d", WT+4+t, L2_W+256*t)
    g.L("K2_WDONE")
    g.I("s_mov_b64 s[50:51], 0")
    g.I("s_mov_b32 s57, 0")
    g.I("s_mov_b32 s59, 0")
    g.I("s_waitcnt lgkmcnt(0)")
    g.I("s_barrier")
    TM=DD
    def process(rc, tag):
        g.I("v_cmp_ne_u32 vcc, s48, v%d", rc+4)
        g.I("v_lshrrev_b32 v%d, 11, v%d", TM, rc+5)
        g.I("s_mov_b64 s[52:53], exec")
        g.I("s_and_b64 exec, exec, vcc")
        g.I("s_cbranch_execz %s_ADV", tag)
        g.I("ds_add_rtn_u32 v%d, v%d, v%d offset:%d", TM+1, TM, vone, L2_G)
        gk=TM+4; rh=TM+8; fc=TM+11
        g.I("v_lshlrev_b32 v%d, 16, v%d", gk, rc)
        g.I("v_and_b32 v%d, 0xffff0000, v%d", gk+1, rc)
        g.I("v_lshlrev_b32 v%d, 16, v%d", gk+2, rc+1)
        g.I("v_and_b32 v%d, 0xffff0000, v%d", gk+3, rc+1)
        g.I("v_lshlrev_b32 v%d, 16, v%d", fc, rc+2)
        g.I("v_and_b32 v%d, 0xffff0000, v%d", rh, rc+2)
        g.I("v_lshlrev_b32 v%d, 16, v%d", rh+1, rc+3)
        g.I("v_and_b32 v%d, 0xffff0000, v%d", rh+2, rc+3)
        for k in range(4): g.I("v_mul_f32 v%d, v%d, v%d", gk+k, gk+k, fc)
        pk=TM+12
        g.I("v_cvt_pk_bf16_f32 v%d, v%d, v%d", pk, gk, gk+1)
        g.I("v_cvt_pk_bf16_f32 v%d, v%d, v%d", pk+1, gk+2, gk+3)
        for x in range(3):
            for k in range(4): g.I("v_mul_f32 v%d, v%d, v%d", TM+20+k, gk+k, rh+x)
            g.I("v_cvt_pk_bf16_f32 v%d, v%d, v%d", pk+2+2*x, TM+20, TM+21)
            g.I("v_cvt_pk_bf16_f32 v%d, v%d, v%d", pk+3+2*x, TM+22, TM+23)
        g.I("s_waitcnt lgkmcnt(0)")
        s=TM+1
        g.I("v_cmp_lt_u32 vcc, 63, v%d", s)
        g.I("v_and_b32 v%d, 3, v%d", TM+2, s)
        g.I("v_bfe_u32 v%d, v%d, 2, 3", TM+3, s)
        g.I("v_lshl_or_b32 v%d, v%d, 3, v%d", TM+3, TM+2, TM+3)
        g.I("v_and_or_b32 v%d, v%d, 32, v%d", TM+3, s, TM+3)
        g.I("s_or_b64 s[50:51], s[50:51], vcc")
        g.I("s_andn2_b64 s[52:53], s[52:53], vcc")
        g.I("s_andn2_b64 exec, exec, vcc")
        g.I("s_cbranch_execz %s_ADV", tag)
        g.I("v_lshlrev_b32 v%d, 6, v%d", TM, TM)
        g.I("v_lshl_add_u32 v%d, v%d, 2, v%d", TM, TM+3, TM)
        g.I("ds_write_b32 v%d, v%d offset:%d", TM, rc+4, L2_RL)
        g.I("v_lshrrev_b32 v%d, 3, v%d", TM+2, TM+3)
        g.I("v_lshl_add_u32 v%d, v%d, 8, v%d", TM+2, TM+2, rc+5)
        g.I("v_and_b32 v%d, 7, v%d", TM+3, TM+3)
        g.I("v_lshl_add_u32 v%d, v%d, 1, v%d", TM+2, TM+3, TM+2)
        for m in range(4):
            for kk in range(2):
                g.I("ds_write_b16 v%d, v%d offset:%d", TM+2, pk+2*m+kk, L2_A+m*2048+(2*kk)*16)
                g.I("ds_write_b16_d16_hi v%d, v%d offset:%d", TM+2, pk+2*m+kk, L2_A+m*2048+(2*kk+1)*16)
        g.L("%s_ADV"%tag)
        g.I("s_mov_b64 exec, s[52:53]")
        g.I("v_add_u32 v%d, 2, v%d", vI, vI)
        g.I("s_mov_b64 exec, -1")
    for r in range(2):
        g.I("s_waitcnt vmcnt(%d)", (2 if SVL else 6)-2*r)
        g.I("v_cmp_ne_u32 vcc, s48, v%d", RC+8*r+6)
        g.I("s_andn2_b64 exec, vcc, s[50:51]")
        g.I("s_cbranch_execz K2_GEN")
        process(RC+8*r, "K2_P%d"%r)
    g.L("K2_GEN")
    g.I("s_mov_b64 exec, -1")
    g.I("v_cmp_lt_u32 vcc, v%d, v%d", vI, vCnt)
    g.I("v_lshl_add_u32 v%d, v%d, 5, v%d", RC+6, vI, vBase)
    g.I("s_andn2_b64 exec, vcc, s[50:51]")
    g.I("s_cbranch_execz K2_GENDONE")
    g.I("buffer_load_dwordx4 %s, v%d, s[%d:%d], 0 offen", vr(RC,4), RC+6, SREC,SREC+3)
    g.I("buffer_load_dwordx2 %s, v%d, s[%d:%d], 0 offen offset:16", vr(RC+4,2), RC+6, SREC,SREC+3)
    g.I("s_waitcnt vmcnt(0)")
    process(RC, "K2_PG")
    g.I("s_branch K2_GEN")
    g.L("K2_GENDONE")
    g.I("s_mov_b64 exec, -1")
    stamp(g)
    g.I("s_cmp_eq_u64 s[50:51], 0")
    g.I("s_cbranch_scc1 K2_NOFLAG")
    g.I("v_mov_b32 v1, 0")
    g.I("ds_write_b32 v1, v%d offset:%d", vone, L2_G+16)
    g.L("K2_NOFLAG")
    if SVL:
        g.I("s_cmp_lg_u32 s59, 0")
        g.I("s_cbranch_scc1 K2_SVQ")
        svloads()
        g.I("s_mov_b32 s59, 1")
        g.L("K2_SVQ")
    g.I("v_bfe_u32 v%d, v0, 4, 2", TM+2)
    g.I("s_lshl_b32 s14, s3, 8")
    g.I("v_lshl_add_u32 v%d, v%d, 5, s14", vwl, TM+2)
    g.I("s_lshl_b32 s14, s3, 2")
    g.I("v_mov_b32 v%d, s14", TM+3)
    g.I("v_mov_b32 v%d, 0", TM+4)
    g.I("v_and_b32 v1, 63, v0")
    g.I("s_lshl_b32 s14, s3, 13")
    g.I("v_lshl_add_u32 v%d, v1, 4, s14", vtmp)
    g.I("s_waitcnt lgkmcnt(0)")
    g.I("s_barrier")
    g.I("ds_read_b32 v%d, v%d offset:%d", TM, TM+3, L2_G)
    g.I("ds_read_b32 v%d, v%d offset:%d", TM+1, TM+4, L2_G+16)
    g.I("ds_read_b128 %s, v%d offset:%d", vr(VO,4), vwl, L2_RL)
    g.I("ds_read_b128 %s, v%d offset:%d", vr(VO+4,4), vwl, L2_RL+16)
    g.I("s_waitcnt lgkmcnt(2)")
    g.I("v_readfirstlane_b32 s54, v%d", TM)
    g.I("v_readfirstlane_b32 s55, v%d", TM+1)
    g.I("s_min_u32 s54, s54, 64")
    stamp(g)
    def sv_unpack(nwait):
        g.I("s_waitcnt vmcnt(%d)", nwait)
        for d in range(16):
            g.I("v_lshlrev_b32 v%d, 16, v%d", ACC+2*d, SVT+d)
            g.I("v_and_b32 v%d, 0xffff0000, v%d", ACC+2*d+1, SVT+d)
        g.I("s_mov_b32 s57, 1")
    g.L("K2_KSTEP")
    g.I("s_cmp_eq_u32 s54, 0")
    g.I("s_cbranch_scc1 K2_KDONE")
    for m in range(4): g.I("ds_read_b128 %s, v%d offset:%d", vr(AF+4*m,4), vtmp, L2_A+2048*m)
    g.I("s_waitcnt lgkmcnt(4)")
    for i in range(8): g.I("v_add_u32 v%d, v%d, v%d", VO+i, VO+i, vj16)
    variants = [1,2,3,4] if P.get("VAR",1) else [4]
    if len(variants)>1:
        for f in range(8): g.I("v_mov_b32 v%d, 0", FR+f)
        g.I("s_cmp_le_u32 s54, 8");  g.I("s_cbranch_scc1 K2_V1")
        g.I("s_cmp_le_u32 s54, 16"); g.I("s_cbranch_scc1 K2_V2")
        g.I("s_cmp_le_u32 s54, 24"); g.I("s_cbranch_scc1 K2_V3")
    order=[4,0,1,2,3]
    wsec={0:0,1:1,2:1,3:1,4:2}
    tiles=[(si,t) for si in range(5) for t in range(8)]
    nt=len(tiles)
    for np_ in sorted(variants, reverse=True):
        g.L("K2_V%d"%np_)
        nper=2*np_
        def loads(si):
            sec=order[si]; b=BB+32*(si%NBUF)
            for i in range(nper):
                g.I("buffer_load_dwordx4 %s, v%d, s[%d:%d], 0 offen offset:%d", vr(b+4*i,4), VO+i, STAB,STAB+3, 256*sec)
        nl=min(NBUF,5)
        for si in range(nl): loads(si)
        g.I("s_cmp_lg_u32 s57, 0")
        g.I("s_cbranch_scc1 K2_V%d_GO", np_)
        sv_unpack(nper*nl)
        g.L("K2_V%d_GO"%np_)
        def wread(idx):
            si,t=tiles[idx]
            g.I("ds_read_b128 %s, v%d offset:%d", vr(WW+4*(idx%2),4), vj16, L2_W+(wsec[order[si]]*8+t)*256)
        def Pm(idx):
            si,t=tiles[idx]; b=BB+32*(si%NBUF); d=t>>1; sel=46+(t&1); fr=FR+4*(idx&1)
            for p in range(np_):
                g.I("v_perm_b32 v%d, v%d, v%d, s%d", fr+p, b+4*(2*p+1)+d, b+4*(2*p)+d, sel)
        def dreg(idx,x=0):
            si,t=tiles[idx]
            if order[si]==4: return DD+12*(idx&1)+4*x
            return DD+4*(idx%3)
        def Mf(idx):
            si,t=tiles[idx]; fr=FR+4*(idx&1)
            if order[si]==4:
                for x in range(3): g.I("v_mfma_f32_16x16x32_bf16 %s, %s, %s, 0", vr(dreg(idx,x),4), vr(AF+4*(x+1),4), vr(fr,4))
            else:
                g.I("v_mfma_f32_16x16x32_bf16 %s, %s, %s, 0", vr(dreg(idx),4), vr(AF,4), vr(fr,4))
        def Fm(idx):
            si,t=tiles[idx]; w=WW+4*(idx%2); sec=order[si]
            if sec==4:
                for k in range(4):
                    for x in range(3): g.I("v_fmac_f32 v%d, v%d, v%d", ACC+8*(1+x)+t, w+k, dreg(idx,x)+k)
            else:
                for k in range(4): g.I("v_fmac_f32 v%d, v%d, v%d", ACC+8*sec+t, w+k, dreg(idx)+k)
        wread(0); wread(1)
        for idx in range(nt+2):
            if idx<nt:
                si,t=tiles[idx]
                if t==0: g.I("s_waitcnt vmcnt(%d)", nper*(nl-1-si))
                Pm(idx)
                if t==7 and nl<5:
                    loads(nl); nl+=1
                    if nl==5:
                        pass
            if idx>=2:
                g.I("s_waitcnt lgkmcnt(%d)", 1 if idx-1<nt else 0)
                Fm(idx-2)
                if idx<nt: wread(idx)
            if idx==0: g.I("s_waitcnt lgkmcnt(2)")
            if idx<nt: Mf(idx)
        if np_<4 and len(variants)>1:
            g.I("s_branch K2_KDONE")
        else:
            g.I("s_cmp_le_u32 s54, 32")
            g.I("s_cbranch_scc1 K2_KDONE")
            g.I("s_sub_u32 s54, s54, 32")
            g.I("v_add_u32 v%d, 1024, v%d", vtmp, vtmp)
            g.I("ds_read_b128 %s, v%d offset:%d", vr(VO,4), vwl, L2_RL+128)
            g.I("ds_read_b128 %s, v%d offset:%d", vr(VO+4,4), vwl, L2_RL+128+16)
            g.I("s_branch K2_KSTEP")
    g.L("K2_KDONE")
    g.I("s_cmp_eq_u32 s55, 0")
    g.I("s_cbranch_scc1 K2_OUT")
    g.I("s_waitcnt vmcnt(0) lgkmcnt(0)")
    g.I("s_barrier")
    zero_fill()
    g.I("s_mov_b64 s[50:51], 0")
    g.I("s_waitcnt lgkmcnt(0)")
    g.I("s_barrier")
    g.I("s_branch K2_GEN")
    g.L("K2_OUT")
    stamp(g)
    g.I("s_cmp_lg_u32 s57, 0")
    g.I("s_cbranch_scc1 K2_PACK")
    g.I("s_waitcnt vmcnt(0)")
    for s in range(4):
        g.I("buffer_store_dwordx4 %s, v%d, s[%d:%d], 0 offen offset:%d %s", vr(SVT+4*s,4), vsvo, SOUT,SOUT+3, 256*s, P["STORE_MOD"])
    g.I("s_branch K2_FIN")
    g.L("K2_PACK")
    for s in range(4):
        for d in range(4):
            g.I("v_cvt_pk_bf16_f32 v%d, v%d, v%d", BB+4*s+d, ACC+8*s+2*d, ACC+8*s+2*d+1)
        g.I("buffer_store_dwordx4 %s, v%d, s[%d:%d], 0 offen offset:%d %s", vr(BB+4*s,4), vsvo, SOUT,SOUT+3, 256*s, P["STORE_MOD"])
    g.L("K2_FIN")
    if P.get("STAMP"): g.I("s_waitcnt vmcnt(0)")
    stamp_flush(g, 12, 3, 1, 16, 2)
    g.L("K2_END")
    g.I("s_endpgm")
    return BB+32*NBUF

def kd(name, nv, ns):
    acc=(nv+3)//4*4
    return """.amdhsa_kernel %s
  .amdhsa_next_free_vgpr %d
  .amdhsa_next_free_sgpr %d
  .amdhsa_accum_offset %d
  .amdhsa_group_segment_fixed_size 0
  .amdhsa_kernarg_size 88
  .amdhsa_user_sgpr_count 2
  .amdhsa_user_sgpr_kernarg_segment_ptr 1
  .amdhsa_system_sgpr_workgroup_id_x 1
  .amdhsa_float_denorm_mode_32 3
.end_amdhsa_kernel
""" % (name,nv,ns,acc)

g=G()
k1(g)
nv2=k2(g)
body,added=fix_hazards(g.l)
hdr=open("standalone__molecular_angular_painn__graph.s.ref").read().split("; Override")[0]
out=hdr
out+="; @launch kernel=painn_k1_kernel grid=(%d,1,1) block=(256,1,1) lds=%d\n"%(NWG1,LDS1)
out+="; @launch kernel=painn_k2_kernel grid=(%d,1,1) block=(256,1,1) lds=%d\n"%(632 if P.get("REMAP",1) else NB,LDS2)
out+='.amdgcn_target "amdgcn-amd-amdhsa--gfx950"\n.text\n'
out+=".globl painn_k1_kernel\n.type painn_k1_kernel,@function\n.globl painn_k2_kernel\n.type painn_k2_kernel,@function\n"
out+="\n".join(body)+"\n"
out+='.section .rodata,"a"\n.p2align 6\n'+kd("painn_k1_kernel",248,102)+".p2align 6\n"+kd("painn_k2_kernel",nv2,80)
open(sys.argv[1],"w").write(out)
print("wrote",sys.argv[1],"lines",len(body),"auto nops",added,"k2 vgprs",nv2,"LDS1",LDS1)
```
